```python
import torch

def _softmax(x, axis=-1):
    return torch.softmax(x, dim=axis)

def _gelu(x):
    return torch.nn.functional.gelu(x, approximate='tanh')

def _silu(x):
    return torch.nn.functional.silu(x)

def _sigmoid(x):
    return torch.sigmoid(x)

def _layernorm(x, axis=-1, eps=1e-05):
    m = x.mean(dim=axis, keepdim=True)
    v = x.var(dim=axis, keepdim=True, unbiased=False)
    return (x - m) / torch.sqrt(v + eps)

def _scatter_add(tgt, idx, src, axis=0):
    return tgt.clone().index_add_(axis, idx, src)

def _segment_sum(src, seg, n):
    out = torch.zeros((n,) + src.shape[1:], dtype=src.dtype)
    return out.index_add_(0, seg, src)

def _pad(x, pw):
    flat = tuple((v for pair in reversed(pw) for v in pair))
    return torch.nn.functional.pad(x, flat)
kernel_name = 'adaLN_cond__sliding_block_cached__glu_gated_swiglu__decode'

def setup_inputs():

    _w = lambda a: (lambda t: t.to(torch.bfloat16) if t.is_floating_point() else t)(torch.as_tensor(a))

    def _A_setup():
        B, Sq, D = (8, 1, 448)
        Hq, Hkv, Sk, Dh = (16, 8, 8192, 256)
        assert Hq % Hkv == 0, (Hq, Hkv)
        return {'x': _w((lambda *s: torch.randn(*s, dtype=torch.bfloat16) * 0.05)(B, Sq, D)), 'k_cache': _w((lambda *s: torch.randn(*s, dtype=torch.bfloat16) * 0.8)(B, Hkv, Sk, Dh)), 'v_cache': _w((lambda *s: torch.randn(*s, dtype=torch.bfloat16) * 3.2)(B, Hkv, Sk, Dh)), 'wq': _w((lambda *s: torch.randn(*s, dtype=torch.bfloat16) * 0.8)(D, Hq * Dh) * D ** (-0.5)), 'wo': _w((lambda *s: torch.randn(*s, dtype=torch.bfloat16) * 3.2)(Hq * Dh, D) * (Hq * Dh) ** (-0.5))}
    _A_in = _A_setup()

    def _B_setup():
        B, S, D, F = (8, 1, 448, 1792)
        return {'x': _w((lambda *s: torch.randn(*s, dtype=torch.bfloat16) * 0.05)(B, S, D)), 'w1': _w((lambda *s: torch.randn(*s, dtype=torch.bfloat16) * 1.6)(D, F) * (2.0 / D) ** 0.5), 'w3': _w((lambda *s: torch.randn(*s, dtype=torch.bfloat16) * 1.6)(D, F) * (2.0 / D) ** 0.5), 'w2': _w((lambda *s: torch.randn(*s, dtype=torch.bfloat16) * 1.6)(F, D) * (2.0 / F) ** 0.5)}
    _B_in = _B_setup()
    return {'A_x': _A_in['x'], 'A_k_cache': _A_in['k_cache'], 'A_v_cache': _A_in['v_cache'], 'A_wq': _A_in['wq'], 'A_wo': _A_in['wo'], 'B_x': _B_in['x'], 'B_w1': _B_in['w1'], 'B_w3': _B_in['w3'], 'B_w2': _B_in['w2'], 'c': _w((lambda *s: torch.randn(*s, dtype=torch.bfloat16) * 0.4)(8, 448) * 8.0), 'w_mod': _w((lambda *s: torch.randn(*s, dtype=torch.bfloat16) * 0.4)(448, 6 * 448) * 448 ** (-0.5) * 8.0)}

def reference(A_x, A_k_cache, A_v_cache, A_wq, A_wo, B_x, B_w1, B_w3, B_w2, c, w_mod):

    def _A_ref(x, k_cache, v_cache, wq, wo):
        B, Sq, D = x.shape
        Hq, Dh = (16, 256)
        Hkv, Sk = (k_cache.shape[1], k_cache.shape[2])
        W = min(4096, max(256, Sk // 4))
        rep = Hq // Hkv
        q = (lambda x, *d: x.permute(*d))((x @ wq).reshape(B, Sq, Hq, Dh), 0, 2, 1, 3)
        k = (lambda x, n, axis: torch.repeat_interleave(x, n, dim=axis))(k_cache[:, :, Sk - W:, :], rep, axis=1)
        v = (lambda x, n, axis: torch.repeat_interleave(x, n, dim=axis))(v_cache[:, :, Sk - W:, :], rep, axis=1)
        scores = torch.einsum('bhqd,bhkd->bhqk', q, k) * Dh ** (-0.5)
        p = _softmax(scores, axis=-1)
        o = torch.einsum('bhqk,bhkd->bhqd', p, v)
        return (lambda x, *d: x.permute(*d))(o, 0, 2, 1, 3).reshape(B, Sq, Hq * Dh) @ wo

    def _B_ref(x, w1, w3, w2):
        gate = torch.einsum('bsd,df->bsf', x, w1)
        up = torch.einsum('bsd,df->bsf', x, w3)
        h = _silu(gate) * up
        out = torch.einsum('bsf,fd->bsd', h, w2)
        return out
    x = A_x
    mod = (_silu(c) @ w_mod).reshape(c.shape[0], 6, 1, -1)
    sa, ca, ga, sb, cb, gb = (mod[:, 0].clone(), mod[:, 1].clone(), mod[:, 2].clone(), mod[:, 3].clone(), mod[:, 4].clone(), mod[:, 5].clone())
    h = _layernorm(x, axis=-1) * (1 + ca) + sa
    x = x + ga * _A_ref(h, A_k_cache, A_v_cache, A_wq, A_wo)
    h = _layernorm(x, axis=-1) * (1 + cb) + sb
    x = x + gb * _B_ref(h, B_w1, B_w3, B_w2)
    return x
```

```python
import re

REG = re.compile(r"(?<![\w.])([vas])(\d+)(?![\w\[])|(?<![\w.])([vas])\[(\d+):(\d+)\]|(?<![\w.])(vcc|exec|m0)(?![\w])")


def regs_of(tok):
    out = []
    for m in REG.finditer(tok):
        if m.group(1):
            out.append((m.group(1), int(m.group(2))))
        elif m.group(3):
            out += [(m.group(3), i) for i in range(int(m.group(4)), int(m.group(5)) + 1)]
        else:
            out.append((m.group(6), 0))
    return out


def split_ops(rest):
    ops, depth, cur = [], 0, ""
    for ch in rest:
        if ch in "[(":
            depth += 1
        if ch in "])":
            depth -= 1
        if ch == "," and depth == 0:
            ops.append(cur.strip())
            cur = ""
        else:
            cur += ch
    if cur.strip():
        ops.append(cur.strip())
    return ops


TRANS = ("v_exp_f32", "v_log_f32", "v_rcp_f32", "v_rsq_f32", "v_sqrt_f32", "v_sin_f32", "v_cos_f32")


class Ins:
    def __init__(self, text):
        self.text = text
        t = text.split(";")[0].strip()
        self.label = t[:-1] if t.endswith(":") else None
        self.directive = t.startswith(".") and not self.label
        self.op = None
        self.defs, self.uses = set(), set()
        self.cls = None
        self.ws = 0
        if self.label or self.directive or not t:
            return
        parts = t.split(None, 1)
        op = self.op = parts[0]
        ops = split_ops(parts[1]) if len(parts) > 1 else []
        R = [regs_of(re.sub(r"(quad_perm:\[[^\]]*\]|hwreg\([^)]*\))", "", o)) for o in ops]
        self.ws = 1
        self.dpp = "_dpp" in op
        self.target = None
        if op == "s_nop":
            self.cls = "nop"
            self.ws = int(ops[0], 0) + 1
        elif op.startswith("v_mfma"):
            self.cls = "mfma"
            self.defs = set(R[0])
            self.srcA, self.srcB, self.srcC = set(R[1]), set(R[2]), set(R[3])
            self.uses = self.srcA | self.srcB | self.srcC
            self.dlist, self.clist = R[0], R[3]
        elif op.startswith("v_"):
            self.cls = "valu"
            self.defs = set(R[0])
            for r in R[1:]:
                self.uses |= set(r)
            if op.startswith("v_permlane"):
                self.defs |= set(R[1])
                self.uses |= set(R[0])
            if op.startswith(("v_fmac", "v_pk_fmac", "v_dot2c")) or self.dpp:
                self.uses |= set(R[0])
            self.dppsrc = set(R[1]) if self.dpp else set()
            self.trans = op.startswith(TRANS)
        elif op.startswith("ds_"):
            self.cls = "ds"
            if op.startswith(("ds_read", "ds_bpermute", "ds_swizzle")):
                self.defs = set(R[0])
                for r in R[1:]:
                    self.uses |= set(r)
            else:
                for r in R:
                    self.uses |= set(r)
        elif op.startswith(("buffer_", "global_")):
            self.cls = "vmem"
            self.lds = bool(re.search(r"\blds\b", t))
            self.store = "store" in op
            if op.startswith("buffer_wbl2"):
                pass
            elif "load" in op and not self.lds:
                self.defs = set(R[0])
                for r in R[1:]:
                    self.uses |= set(r)
            else:
                for r in R:
                    self.uses |= set(r)
            self.wide = set()
            if self.store and ("x3" in op or "x4" in op):
                self.wide = set(R[0]) if op.startswith("buffer_") else set(R[1])
            if self.lds:
                self.uses.add(("m0", 0))
        elif op.startswith("s_"):
            self.cls = "salu"
            if op.startswith(("s_cbranch", "s_branch")):
                self.cls = "branch"
                self.target = ops[0]
            elif op.startswith(("s_cmp", "s_waitcnt", "s_barrier", "s_endpgm", "s_sleep", "s_setprio", "s_bitcmp")):
                for r in R:
                    self.uses |= set(r)
            else:
                self.defs = set(R[0]) if R else set()
                for r in R[1:]:
                    self.uses |= set(r)
        else:
            raise ValueError("unknown instruction " + text)


def need(p, c):
    n = 0
    vec = lambda s: {r for r in s if r[0] in "va" and len(r[0]) == 1}
    sca = lambda s: {r for r in s if r[0] in ("s", "vcc")}
    if p.cls == "valu":
        pv, ps = vec(p.defs), sca(p.defs)
        if c.cls == "mfma" and pv & c.uses:
            n = max(n, 2)
        if c.cls == "valu":
            if c.dpp and pv & c.uses:
                n = max(n, 2)
            if c.op.startswith("v_permlane") and pv & c.uses:
                n = max(n, 2)
            if c.op.startswith(("v_readlane", "v_readfirstlane")) and pv & c.uses:
                n = max(n, 1)
            if p.trans and pv & c.uses:
                n = max(n, 1)
            if ps & c.uses:
                n = max(n, 4 if c.op.startswith(("v_readlane", "v_writelane")) else 2)
        if c.cls == "vmem" and ps & c.uses:
            n = max(n, 5)
        if c.cls == "salu" and ps & c.uses:
            n = max(n, 1)
    if p.cls == "mfma":
        if c.cls == "mfma":
            if p.defs & (c.srcA | c.srcB):
                n = max(n, 8)
            chain = p.dlist == c.clist and p.op == c.op
            if p.defs & (c.srcC | c.defs) and not chain:
                n = max(n, 6)
        elif c.cls in ("valu", "ds", "vmem"):
            if p.defs & (c.uses | c.defs):
                n = max(n, 8)
            if c.cls == "valu" and p.srcC & c.defs:
                n = max(n, 3)
    if p.cls == "salu" and ("m0", 0) in p.defs and ("m0", 0) in c.uses and c.cls == "vmem":
        n = max(n, 1)
    if p.cls == "vmem" and p.wide and p.wide & c.defs and c.cls in ("valu", "mfma", "ds", "vmem"):
        n = max(n, 2)
    return n


def pad_hazards(lines):
    ins = [Ins(l) for l in lines]
    saved = {}
    for _ in range(3):
        out, hist = [], []
        for i in ins:
            if i.label:
                for h in saved.get(i.label, []):
                    hist.append([h[0], h[1]])
                out.append(i)
                continue
            if i.op is None:
                out.append(i)
                continue
            req = 0
            for p, d in hist:
                req = max(req, need(p, i) - d)
            if req > 0:
                nop = Ins(f"s_nop {req - 1}")
                out.append(nop)
                for h in hist:
                    h[1] += req
            for h in hist:
                h[1] += i.ws
            hist = [h for h in hist if h[1] < 12]
            if i.cls in ("valu", "mfma", "salu", "vmem"):
                hist.append([i, 0])
            out.append(i)
            if i.cls == "branch":
                old = saved.setdefault(i.target, [])
                for h in hist:
                    if not any(o[0] is h[0] and o[1] <= h[1] for o in old):
                        old.append((h[0], h[1]))
                if i.op == "s_branch":
                    hist = []
            if i.op == "s_endpgm":
                hist = []
        ins = out
    return [i.text for i in ins]


class Prog:
    def __init__(self):
        self.L = []
        self.cold = []
        self.nvm = 0
        self.done = -1
        self.uid = 0

    def __call__(self, *ls):
        for l in ls:
            self.L.append(l)

    def vm(self, text):
        self.L.append(text)
        self.nvm += 1
        assert self.nvm - 1 - self.done <= 63, "too many vmem ops in flight"
        return self.nvm - 1

    def wait(self, op):
        if op <= self.done:
            return
        self.L.append(f"s_waitcnt vmcnt({self.nvm - 1 - op})")
        self.done = op

    def waitall(self):
        self.wait(self.nvm - 1)

    def lgk(self, n=0):
        self.L.append(f"s_waitcnt lgkmcnt({n})")

    def label(self, stem):
        self.uid += 1
        return f"L_{stem}_{self.uid}"
```

```python
import sys, os
sys.path.insert(0, os.path.dirname(os.path.abspath(__file__)))
from asmlib import Prog, pad_hazards

KN = "adaLN_cond__sliding_block_cached__glu_gated_swiglu__decode_kernel"

QBUF, PBUF, HBUF, MODBUF, MLBUF, FBUF, OBUF, WSEND = 0x0, 0x80000, 0xF0000, 0xF2000, 0xFA000, 0x100000, 0x170000, 0x1D0000
STAMP = 0x400000
AREA_A, AREA_B, SLOT0, SCR = 0, 57344, 114688, 148480
REG_W = 14336
WQOFF = 8448
HQ, QL, OPART, ORED, STAT, GU = SCR, SCR + 2048, SCR + 3072, SCR + 9216, SCR + 11264, SCR + 11520
LDS_BYTES = SCR + 13568
OOB = 0x40000000
LOG2E = 0x3FB8AA3B
CSC = 0x3DB8AA3B
EPS = 0x3727C5AC
RN = 0x3B124925

sW, sHKV, sS, sB, sJ = "s3", "s4", "s5", "s6", "s7"
K_, V_, WS_, WA_, WB_, WO_, W2_, WQ_ = 8, 12, 16, 20, 24, 28, 32, 36
BLK = 40
sSL0, sSL1, sWST = "s56", "s57", "s58"
t0, t1, t2, t3, t4 = "s59", "s60", "s61", "s62", "s63"
pX, pK, pV, pWQ, pWO, pW1, pW3, pW2, pC, pWM, pOUT, pDBG, pWS = 64, 66, 68, 70, 72, 76, 78, 80, 82, 84, 86, 88, 90
sSPIN, sG = "s92", "s93"
mN8, mH, mPAR, mT = "s[94:95]", "s[96:97]", "s[98:99]", "s[100:101]"
srd = lambda r: f"s[{r}:{r+3}]"
sp = lambda r: f"s[{r}:{r+1}]"

vL, vLIN, vKG, vKR0, vKR1, vV, vVB, vWG, vWR, vWOR, vM0, vM1, vOL, vST, vGA, vOR = ["v%d" % i for i in range(16)]
cGA, cX, cCB, cSB = 16, 18, 20, 22
T = 24
VQ, VS, VD, VA, VACC, VW = 32, 64, 80, 96, 128, 144
v = lambda i: f"v{i}"
vr = lambda i, n: f"v[{i}:{i+n-1}]"
ar = lambda i, n: f"a[{i}:{i+n-1}]"
FULL = "row_mask:0xf bank_mask:0xf"


DEF = dict(D=5, DV=5, DI=8, DIEND=40, rot=(1, 1, 2), F0=20, H0=40, Q0=53, M0=78, C0=90, X1=92,
           W13=(10, 52), spin=1 << 20, stamps=False, pref=True, w2late=True, kflag="nt", wflag="nt")


def build(**kw):
    c = dict(DEF)
    c.update(kw)
    head = Prog()
    prologue(head, c)
    N, I = Prog(), Prog()
    I.uid = 1000
    program(N, c, False)
    program(I, c, True)
    lines = head.L + N.L + N.cold + ["L_progI:"] + I.L + I.cold + ["L_end:", "s_endpgm"]
    lines = pad_hazards(lines)
    body = "\n".join(("" if l.endswith(":") else "    ") + l for l in lines)
    return HEADER + body + "\n" + FOOTER


HEADER = f"""; Fused decode step: adaLN modulation -> q projection -> sliding-window GQA attention -> wo -> adaLN -> SwiGLU FFN.
; @launch grid=(256,1,1) block=(256,1,1) lds={LDS_BYTES}
.amdgcn_target "amdgcn-amd-amdhsa--gfx950"
.text
.globl {KN}
.p2align 8
.type {KN},@function
{KN}:
"""
FOOTER = f"""L_codeend:
.section .rodata,"a"
.p2align 6
.amdhsa_kernel {KN}
  .amdhsa_next_free_vgpr 512
  .amdhsa_next_free_sgpr 102
  .amdhsa_accum_offset 256
  .amdhsa_group_segment_fixed_size 0
  .amdhsa_kernarg_size 112
  .amdhsa_user_sgpr_count 2
  .amdhsa_user_sgpr_kernarg_segment_ptr 1
  .amdhsa_system_sgpr_workgroup_id_x 1
  .amdhsa_float_denorm_mode_32 3
.end_amdhsa_kernel
"""


def mk_srd(P, r, ptr, off, nrec):
    if off is None:
        P(f"s_mov_b32 s{r}, s{ptr}", f"s_mov_b32 s{r+1}, s{ptr+1}")
    else:
        P(f"s_add_u32 s{r}, s{ptr}, {off}", f"s_addc_u32 s{r+1}, s{ptr+1}, 0")
    P(f"s_mov_b32 s{r+2}, {nrec}", f"s_mov_b32 s{r+3}, 0x20000")


def prologue(P, c):
    a, b_, g_ = c["rot"]
    P("s_cmp_ge_u32 s2, 256", "s_cbranch_scc1 L_end",
      "s_load_dwordx16 s[64:79], s[0:1], 0", "s_load_dwordx8 s[80:87], s[0:1], 64", "s_load_dwordx4 s[88:91], s[0:1], 96")
    if c["stamps"]:
        P("s_memrealtime s[0:1]")
    P("v_lshrrev_b32 v1, 6, v0", "v_and_b32 v0, 63, v0", f"v_readfirstlane_b32 {sW}, v1",
      f"s_and_b32 {sHKV}, s2, 7", f"s_bfe_u32 {sS}, s2, 0x20003", f"s_lshr_b32 {sB}, s2, 5",
      f"v_lshrrev_b32 {vKG}, 5, {vL}", f"v_xor_b32 {vKG}, {vKG}, {vL}", f"v_lshlrev_b32 {vKG}, 4, {vKG}",
      f"v_lshlrev_b32 {vLIN}, 4, {vL}",
      f"s_lshl_b32 {t0}, {sB}, 3", f"s_add_u32 {t0}, {t0}, {sHKV}", f"s_lshl_b32 {t0}, {t0}, 6",
      f"s_lshl_b32 {t1}, {sS}, 2", f"s_add_u32 {t1}, {t1}, {sW}", f"s_add_u32 {t0}, {t0}, {t1}",
      f"s_add_u32 {t0}, {t0}, 48", f"s_lshl_b32 {t0}, {t0}, 16",
      f"s_mul_i32 {t1}, {sHKV}, {a}", f"s_mul_i32 {t2}, {sW}, {b_}", f"s_add_u32 {t1}, {t1}, {t2}",
      f"s_lshr_b32 {t2}, s2, 3", f"s_mul_i32 {t2}, {t2}, {g_}", f"s_add_u32 {t1}, {t1}, {t2}",
      f"s_and_b32 {t1}, {t1}, 15", f"s_lshl_b32 s{BLK}, {t1}, 12",
      f"s_mul_i32 {sSL0}, {sW}, 8448", f"s_add_u32 {sSL0}, {sSL0}, {SLOT0}",
      f"s_mul_i32 {sSL1}, {sW}, {REG_W}", f"s_add_u32 {sWST}, {sSL1}, {AREA_B}",
      f"s_and_b32 {sJ}, s2, 31", f"s_and_b32 {t2}, {sB}, 1", f"s_lshl_b32 {t2}, {t2}, 2", f"s_xor_b32 {t2}, {t2}, {sJ}",
      f"s_cmp_eq_u32 {sS}, 3", f"s_cselect_b32 {sJ}, {t2}, {sJ}",
      f"s_mov_b32 {sSPIN}, 0",
      "s_waitcnt lgkmcnt(0)")
    mk_srd(P, K_, pK, t0, 0x10000)
    mk_srd(P, V_, pV, t0, 0x10000)
    P(f"s_cmp_ge_u32 {sJ}, 28", "s_cbranch_scc1 L_progI")


def rb(P, d, s):
    P(f"v_cvt_pk_bf16_f32 {d}, 0, {s}")


def poll(P, c, loads, check, name, pre=()):
    st = {}

    def issue():
        P(*pre)
        for l in loads:
            if l.startswith(("buffer_", "global_")):
                st["op"] = P.vm(l)
            else:
                P(l)

    def verify():
        slow, back = P.label(name + "_slow"), P.label(name + "_ok")
        P.wait(st["op"])
        P(*check)
        P(f"s_cbranch_vccnz {slow}", f"{back}:")
        P.cold += [f"{slow}:", f"s_add_u32 {sSPIN}, {sSPIN}, 1", f"s_cmp_gt_u32 {sSPIN}, {c['spin']}",
                   f"s_cbranch_scc1 {back}"] + list(loads) + ["s_waitcnt vmcnt(0)"] + list(check) + \
                  [f"s_cbranch_vccnz {slow}", f"s_branch {back}"]
    return issue, verify


def program(P, c, svc):
    D, DV = c["D"], c["DV"]
    ev = {}
    stamp_n = [0]

    def at(n, f):
        ev.setdefault(n, []).append(f)

    def stamp(idx):
        if c["stamps"]:
            P("s_memrealtime s[74:75]", "s_waitcnt lgkmcnt(0)", f"v_accvgpr_write_b32 a{240+idx}, s74")

    first = -28 if svc else 0
    depth = lambda n: (c["DI"] if (svc and n < c["DIEND"]) else (D if n < 64 else DV))
    sop = {}

    def done_slot(n):
        m = n + 1
        while m - depth(m) < n:
            m += 1
        return m

    def setup_blocks():
        for t in range(1, 16):
            P(f"s_add_u32 s{BLK+t}, s{BLK+t-1}, 0x1000", f"s_and_b32 s{BLK+t}, s{BLK+t}, 0xffff")

    clr = {}

    def clears():
        mk_srd(P, WS_, pWS, None, WSEND)
        for i in range(4):
            P(f"v_mov_b32 v{T+i}, -1")
        P(f"s_lshl_b32 {t0}, s2, 2", f"s_add_u32 {t0}, {t0}, {sW}", f"s_lshl_b32 {t0}, {t0}, 11")
        P.vm(f"buffer_store_dwordx4 {vr(T,4)}, {vLIN}, {srd(WS_)}, {t0} offen sc1")
        clr["op"] = P.vm(f"buffer_store_dwordx4 {vr(T,4)}, {vLIN}, {srd(WS_)}, {t0} offen offset:1024 sc1")

    def flag():
        mk_srd(P, W2_, pDBG, None, 256)
        P(f"s_lshl_b32 {t0}, {sW}, 6", f"v_add_u32 v{T}, {t0}, {vL}", f"v_lshlrev_b32 v{T}, 16, v{T}",
          f"v_add_u32 v{T}, s2, v{T}", f"v_mov_b32 v{T+1}, 1")
        P.wait(clr["op"])
        P("s_barrier")
        P.vm(f"buffer_store_byte v{T+1}, v{T}, {srd(W2_)}, 0 offen sc1")

    def setup_common():
        P(f"s_mov_b32 s94, 0x00ff00ff", "s_mov_b32 s95, 0x00ff00ff", "s_mov_b32 s96, 0xf0f0f0f0", "s_mov_b32 s97, 0xf0f0f0f0",
          "s_mov_b32 s98, 0xff00ff00", "s_mov_b32 s99, 0xff00ff00")
        x0, x1, x2 = v(T), v(T+1), v(T+2)
        P(f"v_bfe_u32 {x0}, {vL}, 1, 1", f"v_bfe_u32 {x1}, {vL}, 2, 2", f"v_lshl_add_u32 {x0}, {x0}, 2, {x1}",
          f"v_mul_u32_u24 {x0}, 1056, {x0}", f"v_and_b32 {x1}, 1, {vL}", f"v_lshl_add_u32 {x0}, {x1}, 9, {x0}",
          f"v_lshrrev_b32 {x2}, 4, {vL}", f"v_xor_b32 {x2}, {x2}, {x1}", f"v_lshl_add_u32 {x0}, {x2}, 4, {x0}",
          f"v_add_u32 {vKR0}, {sSL0}, {x0}", f"v_add_u32 {vKR1}, {sSL1}, {x0}")
        P(f"v_lshrrev_b32 {x0}, 3, {vL}", f"v_and_b32 {x1}, 7, {vL}", f"v_lshlrev_b32 {x1}, 4, {x1}",
          f"v_lshl_add_u32 {vVB}, {x0}, 9, {x1}")
        P(f"v_and_b32 {x0}, 1, {vL}", f"v_lshlrev_b32 {x0}, 4, {x0}", f"v_mov_b32 {x1}, 0xffff", f"v_lshlrev_b32 {x0}, {x0}, {x1}",
          f"v_and_b32 {x1}, 2, {vL}", f"v_cmp_eq_u32 vcc, 0, {x1}", f"v_cndmask_b32 {vM0}, 0, {x0}, vcc",
          f"v_cndmask_b32 {vM1}, {x0}, 0, vcc")
        P(f"v_bfe_u32 {x0}, {vL}, 4, 1", f"v_and_b32 {x1}, 7, {vL}", f"v_lshlrev_b32 {x1}, 5, {x1}",
          f"v_lshl_add_u32 {x0}, {x0}, 8, {x1}", f"v_lshrrev_b32 {x1}, 5, {vL}", f"v_lshl_add_u32 {vOL}, {x1}, 4, {x0}")

    def setup_tail():
        x0, x1, x2 = v(T), v(T+1), v(T+2)
        P(f"v_lshrrev_b32 {x0}, 4, {vL}", f"v_bfe_u32 {x1}, {vL}, 2, 2", f"v_lshl_add_u32 {x0}, {x0}, 4, {x1}",
          f"v_mul_u32_u24 {x0}, 896, {x0}", f"v_and_b32 {x1}, 3, {vL}", f"v_lshl_add_u32 {x0}, {x1}, 3, {x0}",
          f"s_mul_i32 {t0}, {sW}, 224", f"v_add_u32 {vWOR}, {t0}, {x0}")
        P(f"v_bfe_u32 {x0}, {vL}, 3, 1", f"v_lshrrev_b32 {x1}, 4, {vL}", f"v_lshlrev_b32 {x1}, 6, {x1}",
          f"v_lshl_add_u32 {x0}, {x0}, 8, {x1}", f"v_and_b32 {x1}, 7, {vL}", f"v_lshl_add_u32 {x0}, {x1}, 3, {x0}",
          f"v_add_u32 {vOR}, {ORED}, {x0}")
        P(f"s_lshl_b32 {t0}, {sB}, 2", f"s_add_u32 {t0}, {t0}, {sW}", f"s_mul_i32 {t0}, {t0}, 14336",
          f"v_and_b32 {x0}, 15, {vL}", f"v_cmp_eq_u32 vcc, 0, {x0}", f"v_add_u32 {x0}, {t0}, {vL}", f"v_mov_b32 {x1}, {OOB}",
          f"v_cndmask_b32 {vST}, {x1}, {x0}, vcc")
        P(f"s_lshl_b32 {t0}, {sHKV}, 9", f"s_lshl_b32 {t1}, {sS}, 6", f"s_add_u32 {t0}, {t0}, {t1}",
          f"s_mul_i32 {t0}, {t0}, 896", f"s_add_u32 {t0}, {t0}, {sSL1}")
        mk_srd(P, WO_, pWO, t0, 256 * 896 + REG_W)

    def prefetch_code():
        if not c["pref"]:
            return
        lab = P.label("pc")
        P(f"s_getpc_b64 {mT}", f"{lab}:",
          f"s_sub_u32 s100, s100, {lab}-{KN}", "s_subb_u32 s101, s101, 0",
          f"s_lshr_b32 {t0}, s2, 3", f"s_lshl_b32 {t0}, {t0}, 2", f"s_add_u32 {t0}, {t0}, {sW}", f"s_lshl_b32 {t0}, {t0}, 8",
          f"v_and_b32 v{T}, 1, {vL}", f"v_lshl_add_u32 v{T}, v{T}, 7, {t0}", f"v_min_u32 v{T}, L_codeend-{KN}-4, v{T}",
          f"v_mov_b32 v{T+1}, s101", f"v_add_co_u32 v{T}, vcc, s100, v{T}", "s_nop 1", f"v_addc_co_u32 v{T+1}, vcc, 0, v{T+1}, vcc")
        P.vm(f"global_load_dword {vGA}, {vr(T,2)}, off")

    wq = {}

    def wq_setup():
        P(f"s_mul_i32 {t0}, {sS}, {112*8192}", f"s_lshl_b32 {t1}, {sHKV}, 10", f"s_add_u32 {t0}, {t0}, {t1}",
          f"s_lshl_b32 {t1}, {sB}, 7", f"s_add_u32 {t0}, {t0}, {t1}")
        mk_srd(P, WQ_, pWQ, t0, 111 * 8192 + 128)
        P(f"v_lshrrev_b32 v{T}, 3, {vL}", f"v_and_b32 v{T+1}, 7, {vL}", f"v_lshlrev_b32 v{T+1}, 4, v{T+1}",
          f"v_lshl_add_u32 v{T}, v{T}, 13, v{T+1}", f"s_lshl_b32 {t0}, {sW}, 18", f"v_add_u32 {vV}, {t0}, v{T}")

    def wq_load(i):
        def f():
            P(f"s_add_u32 {t0}, {sSL1}, {WQOFF + 1024*i}", f"s_mov_b32 m0, {t0}")
            wq["op"] = P.vm(f"buffer_load_dwordx4 {vV}, {srd(WQ_)}, 0 offen {c['wflag']} lds")
            P(f"v_add_u32 {vV}, 0x10000, {vV}")
        return f

    fl_issue, fl_verify = poll(P, c, [f"global_load_dword v{T+7}, v{T+6}, {sp(pDBG)} sc1"],
                               [f"v_cmp_ne_u32 vcc, 0x01010101, v{T+7}"], "flags",
                               pre=[f"v_lshlrev_b32 v{T+6}, 2, {vL}"])

    h_issue, h_verify = poll(P, c, [f"buffer_load_dwordx2 {vr(VD,2)}, v{VD+2}, {srd(WS_)}, 0 offen sc1"],
                             [f"v_cmp_eq_u32 vcc, -1, v{VD}"], "h",
                             pre=[f"s_mul_i32 {t0}, {sS}, 1792", f"s_mul_i32 {t1}, {sW}, 448", f"s_add_u32 {t0}, {t0}, {t1}",
                                  f"s_add_u32 {t0}, {t0}, {HBUF}", f"v_min_u32 v{VD+3}, 55, {vL}",
                                  f"v_lshl_add_u32 v{VD+2}, v{VD+3}, 3, {t0}", f"s_add_u32 {t1}, {t1}, {HQ}",
                                  f"v_lshl_add_u32 v{VD+3}, v{VD+3}, 3, {t1}"])

    def q_unit():
        h_verify()
        P(f"ds_write_b64 v{VD+3}, {vr(VD,2)}")
        x0, x1, x2 = v(T), v(T+1), v(T+2)
        P(f"v_lshrrev_b32 {x0}, 2, {vL}", f"v_and_b32 {x1}, 3, {vL}", f"v_lshlrev_b32 {x1}, 3, {x1}",
          f"v_lshl_add_u32 {x0}, {x0}, 7, {x1}", f"s_lshl_b32 {t0}, {sW}, 5", f"v_add_u32 {x0}, {t0}, {x0}",
          f"v_lshrrev_b32 {x1}, 4, {vL}", f"v_and_b32 {x2}, 7, {vL}", f"v_lshlrev_b32 {x2}, 3, {x2}",
          f"v_lshl_add_u32 {x1}, {x1}, 6, {x2}", f"v_add_u32 {x1}, {HQ}, {x1}")
        P.wait(wq["op"])
        P.lgk()
        P("s_barrier")
        for i in range(7):
            P(f"ds_read_b64_tr_b16 {vr(VA+2*i,2)}, {x0} offset:{REG_W*(i>>1) + WQOFF + 2048*(i&1)}",
              f"ds_read_b64 {vr(VA+16+2*i,2)}, {x1} offset:{256*i}")
        P(f"s_lshl_b32 {t0}, {sHKV}, 16", f"s_lshl_b32 {t1}, {sS}, 11", f"s_add_u32 {t0}, {t0}, {t1}",
          f"s_lshl_b32 {t1}, {sB}, 8", f"s_add_u32 {t0}, {t0}, {t1}", f"s_lshl_b32 {t1}, {sW}, 6", f"s_add_u32 {t0}, {t0}, {t1}",
          f"v_and_b32 {x2}, 15, {vL}", f"v_lshlrev_b32 {x2}, 13, {x2}", f"v_and_b32 v{T+3}, 48, {vL}",
          f"v_add3_u32 {x2}, {x2}, v{T+3}, {t0}", f"v_mov_b32 v{T+3}, {OOB}", f"v_cndmask_b32 {x2}, v{T+3}, {x2}, {mN8}")
        P.lgk()
        for ks in range(3):
            P(f"v_mfma_f32_16x16x32_bf16 {vr(VD,4)}, {vr(VA+4*ks,4)}, {vr(VA+16+4*ks,4)}, {'0' if ks == 0 else vr(VD,4)}")
        P(f"v_mfma_f32_16x16x16_bf16 {vr(VD,4)}, {vr(VA+12,2)}, {vr(VA+28,2)}, {vr(VD,4)}")
        P.vm(f"buffer_store_dwordx4 {vr(VD,4)}, {x2}, {srd(WS_)}, 0 offen offset:{QBUF} sc1")

    q_issue, q_verify = poll(P, c, [f"buffer_load_dwordx4 {vr(VD+4,4)}, v{VD+12}, {srd(WS_)}, 0 offen sc1",
                                    f"buffer_load_dwordx4 {vr(VD+8,4)}, v{VD+13}, {srd(WS_)}, 0 offen sc1"],
                             [f"v_max_u32 v{VD+14}, v{VD+4}, v{VD+8}", f"v_cmp_eq_u32 vcc, -1, v{VD+14}"], "q",
                             pre=[f"s_lshl_b32 {t0}, {sHKV}, 16", f"s_lshl_b32 {t1}, {sB}, 13", f"s_add_u32 {t0}, {t0}, {t1}",
                                  f"s_lshl_b32 {t1}, {sW}, 9", f"s_add_u32 {t0}, {t0}, {t1}",
                                  f"v_lshrrev_b32 v{VD+12}, 5, {vL}", f"v_lshlrev_b32 v{VD+12}, 11, v{VD+12}",
                                  f"v_and_b32 v{VD+13}, 31, {vL}", f"v_lshlrev_b32 v{VD+13}, 4, v{VD+13}",
                                  f"v_add3_u32 v{VD+12}, v{VD+12}, v{VD+13}, {t0}", f"v_add_u32 v{VD+13}, 0x1000, v{VD+12}"])

    def q_gather():
        q_verify()
        a = VD + 4
        for i in range(4):
            P(f"v_add_f32 v{a+i}, v{a+i}, v{a+4+i}")
        x0, x1 = v(T), v(T+1)
        P(f"v_and_b32 {x0}, 31, {vL}", f"v_lshrrev_b32 {x1}, 5, {vL}", f"v_lshlrev_b32 {x1}, 2, {x1}",
          f"v_lshl_add_u32 {x0}, {x0}, 3, {x1}", f"s_lshl_b32 {t0}, {sW}, 8", f"s_add_u32 {t0}, {t0}, {QL}", f"v_add_u32 {x0}, {t0}, {x0}",
          f"v_permlane32_swap_b32 v{a}, v{a+2}", f"v_permlane32_swap_b32 v{a+1}, v{a+3}",
          f"v_add_f32 v{a}, v{a}, v{a+2}", f"v_add_f32 v{a+1}, v{a+1}, v{a+3}", f"v_cvt_pk_bf16_f32 v{a}, v{a}, v{a+1}",
          f"ds_write_b32 {x0}, v{a}",
          f"v_bfe_u32 {x0}, {vL}, 2, 1", f"v_and_b32 {x1}, 48, {vL}", f"v_lshl_add_u32 {x1}, {x0}, 9, {x1}", f"v_add_u32 {x1}, {QL}, {x1}")
        P.lgk()
        P("s_barrier")
        for ks in range(8):
            P(f"ds_read_b128 {vr(VQ+4*ks,4)}, {x1} offset:{64*ks}")

    def k_read(Tn):
        def f():
            P.wait(sop[8*Tn + 7])
            for ks in range(8):
                P(f"ds_read_b128 {ar(32*Tn + 4*ks, 4)}, {vKR1 if Tn & 1 else vKR0} offset:{64*ks}")
        return f

    def qk(Tn):
        d = VD + 4 * (Tn & 3)
        for ks in range(8):
            P(f"v_mfma_f32_16x16x32_bf16 {vr(d,4)}, {ar(32*Tn + 4*ks, 4)}, {vr(VQ+4*ks,4)}, {'0' if ks == 0 else vr(d,4)}")

    def qk_sel(Tn):
        d = VD + 4 * (Tn & 3)
        for tt in range(2):
            P(f"v_cndmask_b32 v{VS+2*Tn+tt}, v{d+2*tt}, v{d+2*tt+1}, {mPAR}")
        for tt in range(2):
            rb(P, v(VS+2*Tn+tt), v(VS+2*Tn+tt))

    vm_, vl_ = T + 4, T + 5

    def lanered(op, r, x):
        P(f"{op}_dpp {r}, {r}, {r} row_ror:8 {FULL}", f"v_mov_b32 {x}, {r}", f"v_permlane16_swap_b32 {r}, {x}",
          f"{op} {r}, {r}, {x}", f"v_mov_b32 {x}, {r}", f"v_permlane32_swap_b32 {r}, {x}", f"{op} {r}, {r}, {x}")

    def softmax1a():
        m = v(vm_)
        P(f"v_max3_f32 {m}, v{VS}, v{VS+1}, v{VS+2}")
        for i in range(3, 15, 2):
            P(f"v_max3_f32 {m}, {m}, v{VS+i}, v{VS+i+1}")
        P(f"v_max_f32 {m}, {m}, v{VS+15}")
        lanered("v_max_f32", m, v(T))
        P(f"s_mov_b32 {t0}, {CSC}")
        for i in range(16):
            P(f"v_sub_f32 v{VS+i}, v{VS+i}, {m}")
        for i in range(16):
            P(f"v_mul_f32 v{VS+i}, {t0}, v{VS+i}")

    def softmax1b():
        l = v(vl_)
        for i in range(16):
            P(f"v_exp_f32 v{VS+i}, v{VS+i}")
        P(f"v_add_f32 {l}, v{VS}, v{VS+1}")
        for i in range(2, 16):
            P(f"v_add_f32 {l}, {l}, v{VS+i}")
        lanered("v_add_f32", l, v(T))
        P(f"s_lshl_b32 {t0}, {sB}, 3", f"s_add_u32 {t0}, {t0}, {sHKV}", f"s_lshl_b32 {t0}, {t0}, 8", f"s_add_u32 {t0}, {t0}, {MLBUF}",
          f"v_and_b32 v{T+6}, 31, {vL}", f"v_lshl_add_u32 v{T+6}, v{T+6}, 3, {t0}",
          f"s_lshl_b32 {t1}, {sS}, 2", f"s_add_u32 {t1}, {t1}, {sW}", f"s_lshl_b32 {t1}, {t1}, 3", f"s_add_u32 {t0}, {t0}, {t1}",
          f"v_lshl_add_u32 v{T}, {vL}, 5, {t0}", f"v_and_b32 v{T+1}, 59, {vL}", f"v_cmp_eq_u32 vcc, 0, v{T+1}",
          f"v_mov_b32 v{T+1}, {OOB}", f"v_cndmask_b32 v{T}, v{T+1}, v{T}, vcc")
        P.vm(f"buffer_store_dwordx2 {vr(vm_,2)}, v{T}, {srd(WS_)}, 0 offen sc1")

    ml_issue, ml_verify = poll(P, c, [f"buffer_load_dwordx2 {vr(VD,2)}, v{T+6}, {srd(WS_)}, 0 offen sc1"],
                               [f"v_cmp_eq_u32 vcc, -1, v{VD+1}"], "ml")

    def softmax2a():
        ml_verify()
        M, L = v(VD+2), v(VD+3)
        P(f"v_max_f32_dpp {M}, v{VD}, v{VD} row_ror:8 {FULL}")
        for r in (4, 2, 1):
            P(f"v_max_f32_dpp {M}, {M}, {M} row_ror:{r} {FULL}")
        P(f"s_mov_b32 {t0}, {CSC}", f"v_sub_f32 {L}, v{VD}, {M}", f"v_mul_f32 {L}, {t0}, {L}", f"v_exp_f32 {L}, {L}",
          f"v_mul_f32 {L}, {L}, v{VD+1}")
        for r in (8, 4, 2, 1):
            P(f"v_add_f32_dpp {L}, {L}, {L} row_ror:{r} {FULL}")
        P(f"v_readlane_b32 {t1}, {M}, 0", f"v_readlane_b32 {t2}, {M}, 16", f"v_readlane_b32 {t3}, {L}, 0", f"v_readlane_b32 {t4}, {L}, 16",
          f"v_mov_b32 {M}, {t1}", f"v_mov_b32 v{VD}, {t2}", f"v_mov_b32 {L}, {t3}", f"v_mov_b32 v{VD+1}, {t4}",
          f"v_cndmask_b32 {M}, {M}, v{VD}, {mH}", f"v_cndmask_b32 {L}, {L}, v{VD+1}, {mH}",
          f"v_sub_f32 {M}, v{vm_}, {M}", f"v_mul_f32 {M}, {t0}, {M}", f"v_exp_f32 {M}, {M}", f"v_rcp_f32 {L}, {L}",
          f"v_mul_f32 {M}, {M}, {L}")
        for i in range(16):
            P(f"v_mul_f32 v{VS+i}, v{VS+i}, {M}")

    def softmax2b():
        for i in range(16):
            P(f"v_cvt_pk_bf16_f32 v{VS+i}, v{VS+i}, v{VS+i}")
        for i in range(16):
            P(f"v_and_b32 v{VA+2*i}, v{VS+i}, {vM0}", f"v_and_b32 v{VA+2*i+1}, v{VS+i}, {vM1}")

    def pv(vi):
        p, t = vi >> 4, vi & 15
        d = VACC + 8 * (p & 1)
        r = 4 * (vi & 31)
        P.wait(sop[64 + vi])
        for hf in range(2):
            P(f"v_mfma_f32_16x16x16_bf16 {vr(d+4*hf,4)}, {vr(VA+2*t,2)}, {ar(r+2*hf,2)}, {'0' if t == 0 else vr(d+4*hf,4)}")

    def pv_merge(p):
        d = VACC + 8 * (p & 1)
        for i in range(4):
            P(f"v_permlane32_swap_b32 v{d+i}, v{d+4+i}")
        for i in range(4):
            P(f"v_add_f32_dpp v{d+i}, v{d+4+i}, v{d+i} row_ror:8 {FULL}")

    def opart_write(p):
        d = VACC + 8 * (p & 1)
        pv_merge(p)
        if p == 0:
            P(f"s_lshl_b32 {t0}, {sW}, 9", f"s_add_u32 {t0}, {t0}, {OPART}", f"v_add_u32 v{T+7}, {t0}, {vOL}")
        P(f"s_mov_b64 exec, {mN8}", f"ds_write_b128 v{T+7}, {vr(d,4)} offset:{2048*p}", "s_mov_b64 exec, -1")

    def opart_publish():
        x = v(T)
        P(f"s_lshl_b32 {t0}, {sW}, 11", f"s_add_u32 {t0}, {t0}, {OPART}", f"v_add_u32 {x}, {t0}, {vOL}")
        for w in range(4):
            P(f"ds_read_b128 {vr(VD+4*w,4)}, {x} offset:{512*w}")
        P(f"s_add_u32 {t0}, {sS}, {sW}", f"s_add_u32 {t0}, {t0}, 1", f"s_and_b32 {t0}, {t0}, 3", f"s_lshl_b32 {t0}, {t0}, 3",
          f"s_and_b32 {t1}, s2, 0xe7", f"s_or_b32 {t0}, {t0}, {t1}", f"s_mul_i32 {t0}, {t0}, 1536",
          f"s_lshl_b32 {t1}, {sW}, 9", f"s_add_u32 {t1}, {t1}, {OBUF}", f"s_cmp_eq_u32 {sW}, 3", f"s_cselect_b32 {t1}, {OOB}, {t1}",
          f"s_add_u32 {t0}, {t0}, {t1}", f"s_mul_i32 {t2}, s2, 1536", f"s_add_u32 {t1}, {t1}, {t2}",
          f"v_add_u32 v{T+1}, {t0}, {vOL}", f"v_mov_b32 v{T+2}, {OOB}", f"v_cndmask_b32 v{T+1}, v{T+2}, v{T+1}, {mN8}",
          f"v_add_u32 v{T+6}, {t1}, {vOL}")
        P.lgk()
        for i in range(4):
            P(f"v_add_f32 v{VD+i}, v{VD+i}, v{VD+4+i}", f"v_add_f32 v{VD+8+i}, v{VD+8+i}, v{VD+12+i}")
        for i in range(4):
            P(f"v_add_f32 v{VD+4+i}, v{VD+i}, v{VD+8+i}")
        P.vm(f"buffer_store_dwordx4 {vr(VD+4,4)}, v{T+1}, {srd(WS_)}, 0 offen sc1")

    of_issue, of_verify = poll(P, c, [f"buffer_load_dwordx4 {vr(VD,4)}, v{T+6}, {srd(WS_)}, 0 offen sc1"],
                               [f"v_cmp_eq_u32 vcc, -1, v{VD}"], "of")

    lin = {}

    def lin_load(r, key, base, i, goff):
        def f():
            P(f"s_add_u32 {t0}, {base}, {1024*i}", f"s_mov_b32 m0, {t0}", f"s_mov_b32 {t1}, {goff + 1024*i}")
            lin[key] = P.vm(f"buffer_load_dwordx4 {vLIN}, {srd(r)}, {t1} offen {c['wflag']} lds")
        return f

    def tr_rows(area, dst, lo, hi):
        x = vWOR
        if area:
            x = v(T+3)
            P(f"v_add_u32 {x}, {area}, {vWOR}")
        n = 0
        for t in range(7):
            for ks in range(2):
                for u in range(2):
                    if lo <= n < hi:
                        P(f"ds_read_b64_tr_b16 {ar(dst(ks, t) + 2*u, 2)}, {x} offset:{896*(8*ks + 4*u) + 32*t}")
                    n += 1

    wo_reg = lambda ks, t: 128 + 16 * t + 4 * ks
    w2_reg = lambda ks, t: 8 * t + 4 * ks

    if not svc:
        def w13_setup():
            P(f"s_lshl_b32 {t0}, {sJ}, 7", f"s_mul_i32 {t1}, {sW}, {112*3584}", f"s_add_u32 {t0}, {t0}, {t1}")
            mk_srd(P, WA_, pW1, t0, 111 * 3584 + 128)
            mk_srd(P, WB_, pW3, t0, 111 * 3584 + 128)
            x0, x1 = v(T), v(T+1)
            P(f"v_lshrrev_b32 {x0}, 3, {vL}", f"v_mul_u32_u24 {x0}, 3584, {x0}", f"v_and_b32 {x1}, 7, {vL}",
              f"v_lshl_add_u32 {vWG}, {x1}, 4, {x0}",
              f"v_bfe_u32 {x0}, {vL}, 4, 1", f"v_mul_u32_u24 {x0}, 2112, {x0}", f"v_bfe_u32 {x1}, {vL}, 3, 1",
              f"v_lshl_add_u32 {x0}, {x1}, 9, {x0}", f"v_lshrrev_b32 {x1}, 5, {vL}", f"v_lshl_add_u32 {x0}, {x1}, 8, {x0}",
              f"v_bfe_u32 {x1}, {vL}, 2, 1", f"v_lshl_add_u32 {x0}, {x1}, 7, {x0}", f"v_and_b32 {x1}, 3, {vL}",
              f"v_lshl_add_u32 {x0}, {x1}, 3, {x0}", f"v_add_u32 {vWR}, {sWST}, {x0}")

        w13_reg = lambda ks, m, t: VW + 32 * ks + 4 * (4 * m + t) if ks < 3 else VW + 96 + 2 * (4 * m + t)
        w13op = {}

        def w13_load(ch, q, u):
            ks, m = ch >> 1, ch & 1

            def f():
                P(f"s_add_u32 {t0}, {sWST}, {4224*(ch % 3) + 1056*(2*q + u)}", f"s_mov_b32 m0, {t0}",
                  f"s_mov_b32 {t1}, {(56*q + 16*ks + 8*u) * 3584}")
                w13op[ch] = P.vm(f"buffer_load_dwordx4 {vWG}, {srd(WB_ if m else WA_)}, {t1} offen {c['wflag']} lds")
            return f

        def w13_read(ch):
            ks, m = ch >> 1, ch & 1

            def f():
                P.wait(w13op[ch])
                for t in range(4):
                    for u in range(2 if ks < 3 else 1):
                        P(f"ds_read_b64_tr_b16 {vr(w13_reg(ks, m, t) + 2*u, 2)}, {vWR} offset:{4224*(ch % 3) + 1056*u + 32*t}")
            return f

        at(0, setup_blocks)
        at(1, clears)
        at(2, wq_setup)
        at(D - 1, setup_common)
        at(D - 1, w13_setup)
        for i in range(4):
            at(3 + 2 * i, wq_load(i))
        at(D + 2, flag)
        at(D + 3, prefetch_code)
        lo, hi = c["W13"]
        lst = [(ch, q, u) for ch in range(8) for q in range(2) for u in range(2 if ch < 6 else 1)]
        pos = [lo + (hi - lo) * i // len(lst) for i in range(len(lst))]
        rd = {}
        for (ch, q, u), n in zip(lst, pos):
            if ch >= 3:
                assert n > rd[ch - 3], (ch, n, rd)
            at(n, w13_load(ch, q, u))
            rd[ch] = done_slot(n + 1)
        for ch in range(8):
            ev.setdefault(rd[ch], []).insert(0, w13_read(ch))
            ev.setdefault(rd[ch] + 1, []).insert(0, P.lgk)
        w13_done = rd[7] + 1
        at(c["F0"], fl_issue)
        at(done_slot(c["F0"] + 1), fl_verify)
    else:
        CV, XV, SB = VQ, VQ + 8, VQ + 16
        PIV, XT = VS, VS + 2
        mop = {}

        def mod_setup():
            P(f"s_lshl_b32 {sG}, {sB}, 2", f"s_add_u32 {sG}, {sG}, {sJ}", f"s_sub_u32 {sG}, {sG}, 28",
              f"s_mul_i32 {t2}, {sG}, 37", f"s_lshr_b32 {t2}, {t2}, 8",
              f"s_mul_i32 {t3}, {t2}, 7", f"s_sub_u32 {t3}, {sG}, {t3}",
              f"s_mul_i32 {t0}, {t2}, 1792", f"s_lshl_b32 {t1}, {t3}, 7", f"s_add_u32 {t0}, {t0}, {t1}",
              f"s_mul_i32 {t1}, {sW}, {112*5376}", f"s_add_u32 {t0}, {t0}, {t1}",
              f"s_cmp_lt_u32 {sG}, 21", f"s_cselect_b32 {t4}, {111*5376 + 1024}, 0", f"s_cselect_b32 {t0}, {t0}, 0")
            mk_srd(P, WA_, pWM, t0, t4)
            x0, x1 = v(T+4), v(T+5)
            P(f"v_lshrrev_b32 {x0}, 3, {vL}", f"v_mul_u32_u24 {x0}, 5376, {x0}", f"v_and_b32 {x1}, 7, {vL}",
              f"v_lshl_add_u32 {vWG}, {x1}, 4, {x0}",
              f"v_mul_u32_u24 {x0}, 896, {x1}", f"v_mov_b32 v{PIV+1}, {x0}", f"v_lshrrev_b32 {x1}, 4, {vL}", f"v_lshl_add_u32 {x0}, {x1}, 3, {x0}",
              f"s_lshl_b32 {t0}, {t3}, 7", f"s_lshl_b32 {t1}, {sW}, 5", f"s_add_u32 {t0}, {t0}, {t1}", f"v_add_u32 v{XT}, {t0}, {x0}",
              f"s_mul_i32 {t0}, {sW}, 224", f"v_add_u32 {x0}, {t0}, {x0}", f"v_and_b32 {x1}, 8, {vL}", f"v_lshl_add_u32 {x1}, {x1}, 2, {x0}")
            for i in range(4):
                P.vm(f"global_load_dwordx2 {vr(CV+2*i,2)}, {x0 if i == 3 else x1}, {sp(pC)} offset:{64*i}")
            for i in range(4):
                P.vm(f"global_load_dwordx2 {vr(XV+2*i,2)}, {x0 if i == 3 else x1}, {sp(pX)} offset:{64*i}")
            P.vm(f"global_load_ushort v{PIV}, v{PIV+1}, {sp(pX)}")
            mop["in"] = P.vm(f"global_load_dwordx2 {vr(XT,2)}, v{XT}, {sp(pX)}")

        def silu_c(i):
            def f():
                P.wait(mop["in"])
                x = [v(T+k) for k in range(4)]
                y = [v(T+4+k) for k in range(4)]
                P(f"v_lshlrev_b32 {x[0]}, 16, v{CV+2*i}", f"v_and_b32 {x[1]}, 0xffff0000, v{CV+2*i}",
                  f"v_lshlrev_b32 {x[2]}, 16, v{CV+2*i+1}", f"v_and_b32 {x[3]}, 0xffff0000, v{CV+2*i+1}")
                for k in range(4):
                    P(f"v_mul_f32 {y[k]}, {LOG2E | 0x80000000:#x}, {x[k]}")
                for k in range(4):
                    P(f"v_exp_f32 {y[k]}, {y[k]}")
                for k in range(4):
                    P(f"v_add_f32 {y[k]}, 1.0, {y[k]}")
                for k in range(4):
                    P(f"v_rcp_f32 {y[k]}, {y[k]}")
                for k in range(4):
                    P(f"v_mul_f32 {x[k]}, {x[k]}, {y[k]}")
                P(f"v_cvt_pk_bf16_f32 v{SB+4*i}, {x[0]}, {x[1]}", f"v_cvt_pk_bf16_f32 v{SB+4*i+1}, {x[2]}, {x[3]}")
                if i < 3:
                    P(f"v_mov_b32_dpp v{SB+4*i+2}, v{SB+4*i} row_ror:8 {FULL}", f"v_mov_b32_dpp v{SB+4*i+3}, v{SB+4*i+1} row_ror:8 {FULL}")
            return f

        S1, S2 = VS + 4, VS + 5

        def stats(i):
            def f():
                x = [v(T+k) for k in range(4)]
                if i == 0:
                    P(f"v_lshlrev_b32 v{PIV}, 16, v{PIV}", f"v_mov_b32 v{S1}, 0", f"v_mov_b32 v{S2}, 0")
                if i == 3:
                    P(f"s_mov_b64 exec, {mN8}")
                P(f"v_lshlrev_b32 {x[0]}, 16, v{XV+2*i}", f"v_and_b32 {x[1]}, 0xffff0000, v{XV+2*i}",
                  f"v_lshlrev_b32 {x[2]}, 16, v{XV+2*i+1}", f"v_and_b32 {x[3]}, 0xffff0000, v{XV+2*i+1}")
                for k in range(4):
                    P(f"v_sub_f32 {x[k]}, {x[k]}, v{PIV}")
                for k in range(4):
                    P(f"v_add_f32 v{S1}, v{S1}, {x[k]}", f"v_fmac_f32 v{S2}, {x[k]}, {x[k]}")
                if i == 3:
                    P("s_mov_b64 exec, -1")
                    lanered("v_add_f32", v(S1), v(T))
                    lanered("v_add_f32", v(S2), v(T))
                    P(f"s_lshl_b32 {t0}, {sW}, 6", f"s_add_u32 {t0}, {t0}, {STAT}", f"v_and_b32 v{T}, 7, {vL}",
                      f"v_lshl_add_u32 v{T}, v{T}, 3, {t0}", f"ds_write_b64 v{T}, {vr(S1,2)}")
            return f

        mreg = lambda m, t: VW + 14 * (4 * m + t)

        def mod_read(m):
            def f():
                P.wait(sop[-28 + 14 * m + 13])
                if m == 0:
                    P(f"v_lshrrev_b32 v{T}, 2, {vL}", f"v_and_b32 v{T+1}, 3, {vL}", f"v_lshlrev_b32 v{T+1}, 3, v{T+1}",
                      f"v_lshl_add_u32 v{T}, v{T}, 7, v{T+1}", f"v_add_u32 {vWR}, {sSL1}, v{T}")
                else:
                    P(f"v_add_u32 {vWR}, {AREA_B}, {vWR}")
                for t in range(4):
                    for i in range(7):
                        P(f"ds_read_b64_tr_b16 {vr(mreg(m, t) + 2*i, 2)}, {vWR} offset:{2048*i + 32*t}")
            return f

        def mod_mfma(m):
            def f():
                P.lgk()
                for ks in range(4):
                    for t in range(4):
                        d = VA + 4 * (4 * m + t)
                        if ks < 3:
                            P(f"v_mfma_f32_16x16x32_bf16 {vr(d,4)}, {vr(mreg(m,t)+4*ks,4)}, {vr(SB+4*ks,4)}, {'0' if ks == 0 else vr(d,4)}")
                        else:
                            P(f"v_mfma_f32_16x16x16_bf16 {vr(d,4)}, {vr(mreg(m,t)+12,2)}, {vr(SB+12,2)}, {vr(d,4)}")
            return f

        def mod_final():
            x0, x1, x2 = v(T), v(T+1), v(T+2)
            P(f"v_lshrrev_b32 {x0}, 4, {vL}", f"v_and_b32 {x1}, 7, {vL}", f"v_lshlrev_b32 {x1}, 4, {x1}",
              f"v_lshl_add_u32 {x0}, {x0}, 7, {x1}", f"v_add_u32 {x1}, {sWST}, {x0}", f"s_mov_b64 exec, {mN8}")
            for mt in range(8):
                P(f"ds_write_b128 {x1}, {vr(VA+4*mt,4)} offset:{512*mt}")
            P("s_mov_b64 exec, -1", f"v_and_b32 {x2}, 8, {vL}", f"v_lshl_add_u32 {x0}, {x2}, 8, {x0}",
              f"s_lshl_b32 {t0}, {sW}, 9", f"s_add_u32 {t0}, {t0}, {AREA_B}", f"v_add_u32 {x0}, {t0}, {x0}",
              f"v_and_b32 {x2}, 7, {vL}", f"v_lshlrev_b32 {x2}, 3, {x2}", f"v_add_u32 {x2}, {STAT}, {x2}")
            P.lgk()
            P("s_barrier")
            for w in range(4):
                P(f"ds_read_b128 {vr(VA+4*w,4)}, {x0} offset:{REG_W*w}", f"ds_read_b64 {vr(VA+16+2*w,2)}, {x2} offset:{64*w}")
            P(f"s_mul_i32 {t2}, {sG}, 37", f"s_lshr_b32 {t2}, {t2}, 8", f"s_mul_i32 {t3}, {t2}, 7", f"s_sub_u32 {t3}, {sG}, {t3}",
              f"s_mul_i32 {t0}, {t2}, {16*896}", f"s_lshl_b32 {t1}, {t3}, 7", f"s_add_u32 {t0}, {t0}, {t1}",
              f"s_lshl_b32 {t1}, {sW}, 5", f"s_add_u32 {t0}, {t0}, {t1}", f"s_add_u32 {t0}, {t0}, {MODBUF - 16*896}",
              f"s_cmp_lt_u32 {sG}, 21", f"s_cselect_b32 {t0}, {t0}, {OOB}",
              f"v_and_b32 {x1}, 15, {vL}", f"v_mul_u32_u24 {x1}, 896, {x1}", f"v_lshrrev_b32 v{T+3}, 4, {vL}",
              f"v_lshl_add_u32 {x1}, v{T+3}, 3, {x1}", f"v_add_u32 {x1}, {t0}, {x1}")
            P.lgk()
            m = VA
            for i in range(4):
                P(f"v_add_f32 v{m+i}, v{m+i}, v{m+4+i}", f"v_add_f32 v{m+8+i}, v{m+8+i}, v{m+12+i}")
            for i in range(4):
                P(f"v_add_f32 v{m+i}, v{m+i}, v{m+8+i}")
            skip = P.label("noh")
            P(f"s_cmp_lt_u32 {sG}, 7", f"s_cbranch_scc0 {skip}")
            s = VA + 16
            mean, var, rs = v(s+2), v(s+3), v(s+4)
            P(f"v_add_f32 v{s}, v{s}, v{s+2}", f"v_add_f32 v{s+1}, v{s+1}, v{s+3}", f"v_add_f32 v{s+4}, v{s+4}, v{s+6}",
              f"v_add_f32 v{s+5}, v{s+5}, v{s+7}", f"v_add_f32 v{s}, v{s}, v{s+4}", f"v_add_f32 v{s+1}, v{s+1}, v{s+5}",
              f"v_mul_f32 v{s}, {RN:#x}, v{s}", f"v_mul_f32 v{s+1}, {RN:#x}, v{s+1}",
              f"v_add_f32 {mean}, v{PIV}, v{s}", f"v_fma_f32 {var}, -v{s}, v{s}, v{s+1}", f"v_max_f32 {var}, 0, {var}")
            rb(P, mean, mean); rb(P, var, var)
            P(f"v_add_f32 {var}, {EPS:#x}, {var}"); rb(P, var, var)
            P(f"v_sqrt_f32 {var}, {var}"); rb(P, var, var)
            P(f"v_rcp_f32 {rs}, {var}")
            y = [v(m+4+k) for k in range(4)]
            z = [v(m+8+k) for k in range(4)]
            e = [v(m+12+k) for k in range(4)]
            P(f"v_lshlrev_b32 {y[0]}, 16, v{XT}", f"v_and_b32 {y[1]}, 0xffff0000, v{XT}",
              f"v_lshlrev_b32 {y[2]}, 16, v{XT+1}", f"v_and_b32 {y[3]}, 0xffff0000, v{XT+1}")
            for k in range(4):
                P(f"v_sub_f32 {y[k]}, {y[k]}, {mean}"); rb(P, y[k], y[k])
                P(f"v_mul_f32 {z[k]}, {y[k]}, {rs}", f"v_fma_f32 {e[k]}, -{z[k]}, {var}, {y[k]}", f"v_fma_f32 {y[k]}, {e[k]}, {rs}, {z[k]}")
                rb(P, y[k], y[k])
                rb(P, v(m+k), v(m+k))
                P(f"v_add_f32 {z[k]}, 1.0, v{m+k}"); rb(P, z[k], z[k])
                P(f"v_mul_f32 {z[k]}, {y[k]}, {z[k]}"); rb(P, z[k], z[k])
            for k in range(4):
                P(f"v_add_f32_dpp v{m+k}, v{m+k}, {z[k]} row_ror:8 {FULL}")
            P(f"s_lshl_b32 {t0}, {sG}, 10", f"s_lshl_b32 {t1}, {sW}, 8", f"s_add_u32 {t0}, {t0}, {t1}", f"s_add_u32 {t0}, {t0}, {HBUF}",
              f"v_lshrrev_b32 {x0}, 4, {vL}", f"v_and_b32 {x1}, 7, {vL}", f"v_lshlrev_b32 {x1}, 3, {x1}", f"v_lshl_add_u32 {x0}, {x0}, 6, {x1}",
              f"v_add_u32 {x0}, {t0}, {x0}", f"v_mov_b32 {x1}, {OOB}", f"v_cndmask_b32 {x1}, {x1}, {x0}, {mPAR}",
              f"{skip}:",
              f"v_cvt_pk_bf16_f32 v{m}, v{m}, v{m+1}", f"v_cvt_pk_bf16_f32 v{m+1}, v{m+2}, v{m+3}",
              f"v_min_u32 v{m}, -2, v{m}", f"v_min_u32 v{m+1}, -2, v{m+1}")
            fl_verify()
            P.vm(f"buffer_store_dwordx2 {vr(m,2)}, {x1}, {srd(WS_)}, 0 offen sc1")

        clears()
        mod_setup()
        at(-28 + c["DI"] - 1, setup_common)
        at(-28 + c["DI"] - 1, setup_blocks)
        n0 = -28 + c["DI"]
        at(n0, flag)
        for i in range(4):
            at(n0 + i, silu_c(i))
            at(n0 + 4 + i, stats(i))
        at(n0 + 8, wq_setup)
        at(n0 + 9, prefetch_code)
        ra, rb_ = done_slot(-15), done_slot(-1)
        at(ra, mod_read(0))
        at(ra + 1, mod_mfma(0))
        for i in range(4):
            at(12 + 2 * i, wq_load(i))
        at(0, fl_issue)
        at(rb_, mod_read(1))
        at(rb_, mod_mfma(1))
        at(rb_ + 1, mod_final)
        w13_done = rb_ + 1

    at(30, setup_tail)
    at(c["H0"], h_issue)
    at(done_slot(c["H0"] + 1), q_unit)
    at(c["Q0"], q_issue)
    nq = done_slot(c["Q0"] + 1)
    assert nq >= w13_done
    at(nq, q_gather)
    kr = {}
    for Tn in range(8):
        kr[Tn] = done_slot(8 * Tn + 7)
        assert kr[Tn] < 8 * Tn + 16
        ev.setdefault(kr[Tn], []).insert(0, k_read(Tn))
        at(kr[Tn], P.lgk)
    n, used = nq + 1, 0
    qks = {}
    for Tn in range(8):
        if n <= kr[Tn]:
            n, used = kr[Tn] + (0 if Tn == 7 else 1), 0
        at(n, P.lgk)
        at(n, (lambda Tn: lambda: qk(Tn))(Tn))
        qks[Tn] = n
        if Tn < 4:
            assert n < 64 + 8 * Tn
        used += 1
        if used == 2:
            n, used = n + 1, 0
    for Tn in range(8):
        ev.setdefault(qks[Tn] + 1, []).insert(0, (lambda Tn: lambda: qk_sel(Tn))(Tn))
    n = qks[7] + 1
    at(n, softmax1a)
    at(n + 1, softmax1b)
    assert c["M0"] > n + 1
    at(c["M0"], ml_issue)
    nm = done_slot(c["M0"] + 1)
    at(nm, softmax2a)
    at(nm + 1, softmax2b)
    pv0 = nm + 2
    vi, n = 0, pv0
    pend = {}
    while n < 128:
        k = 0
        while k < 6 and vi < 64 and done_slot(64 + vi) <= n:
            assert n < 64 + 32 + vi, "V ring overrun"
            at(n, (lambda vi: lambda: pv(vi))(vi))
            if vi & 15 == 15:
                pend[vi >> 4] = n
            vi += 1
            k += 1
        n += 1
    for p in range(3):
        ev.setdefault(pend[p] + 1, []).insert(0, (lambda p: lambda: opart_write(p))(p))
    X3 = pend[2] + 1
    X1 = c["X1"]
    a0, a1 = nq + 1, X1 - DV - 1
    for i in range(14):
        at(a0 + (a1 - a0) * i // 14, lin_load(WO_, "wo0", sWST, i, 0))

    def bar_x1():
        P.wait(lin["wo0"])
        P("s_barrier")
        tr_rows(AREA_B, wo_reg, 0, 14)
    at(X1, bar_x1)
    at(X1 + 1, lambda: tr_rows(AREA_B, wo_reg, 14, 28))
    a0, a1 = X1, X3 - DV - 1
    for i in range(14):
        at(a0 + (a1 - a0) * i // 14, lin_load(WO_, "wo1", sSL1, i, 256 * 896))

    def bar_x3():
        P.wait(lin["wo1"])
        P.lgk()
        P("s_barrier")
        opart_publish()
    at(X3, bar_x3)
    at(X3 + 1, lambda: tr_rows(AREA_A, lambda ks, t: wo_reg(ks + 2, t), 0, 14))
    at(X3 + 2, lambda: tr_rows(AREA_A, lambda ks, t: wo_reg(ks + 2, t), 14, 28))

    if not svc:
        cpre = [f"v_and_b32 v{T}, 15, {vL}", f"v_cmp_gt_u32 {mT}, 14, v{T}", f"v_min_u32 v{T}, 13, v{T}",
                f"v_bfe_u32 v{T+1}, {vL}, 4, 1", f"v_mad_u32_u24 v{T}, v{T+1}, 14, v{T}",
                f"v_lshrrev_b32 v{T+1}, 5, {vL}",
                f"s_lshl_b32 {t0}, {sB}, 2", f"s_add_u32 {t0}, {t0}, {sW}", f"s_mul_i32 {t1}, {t0}, 14336", f"s_add_u32 {t1}, {t1}, {PBUF}",
                f"v_mul_u32_u24 v{T+2}, 448, v{T+1}", f"v_lshl_add_u32 v{T+2}, v{T}, 4, v{T+2}", f"v_add_u32 v{T+2}, {t1}, v{T+2}",
                f"v_mov_b32 {vGA}, {OOB}", f"v_cndmask_b32 {vGA}, {vGA}, v{T+2}, {mT}",
                f"v_lshlrev_b32 v{T+1}, 2, v{T+1}", f"v_lshl_add_u32 v{T}, v{T}, 3, v{T+1}",
                f"s_mul_i32 {t0}, {t0}, 224", f"v_add_u32 v{VS}, {t0}, v{T}", f"v_add_u32 v{VS+1}, {MODBUF}, v{VS}",
                f"v_add_u32 v{VS+2}, {8*896}, v{VS+1}", f"v_add_u32 v{VS+3}, {16*896}, v{VS+1}"]
        c_issue, c_verify = poll(P, c, [f"global_load_dword v{cX+1}, v{VS}, {sp(pX)}",
                                        f"buffer_load_dword v{cGA+1}, v{VS+1}, {srd(WS_)}, 0 offen sc1",
                                        f"buffer_load_dword v{cSB+1}, v{VS+2}, {srd(WS_)}, 0 offen sc1",
                                        f"buffer_load_dword v{cCB+1}, v{VS+3}, {srd(WS_)}, 0 offen sc1"],
                                 [f"v_max3_u32 v{cGA}, v{cGA+1}, v{cSB+1}, v{cCB+1}", f"v_cmp_eq_u32 vcc, -1, v{cGA}"], "mod", pre=cpre)

        def consts():
            c_verify()
            for r in (cGA, cX, cCB, cSB):
                P(f"v_lshlrev_b32 v{r}, 16, v{r+1}", f"v_and_b32 v{r+1}, 0xffff0000, v{r+1}")
            for k in range(2):
                P(f"v_add_f32 v{cCB+k}, 1.0, v{cCB+k}")
                rb(P, v(cCB+k), v(cCB+k))
            P(f"s_mul_i32 {t0}, {sJ}, {64*896}", f"s_add_u32 {t0}, {t0}, {sSL1}")
            mk_srd(P, W2_, pW2, t0, REG_W)
    else:
        cpre = [f"v_and_b32 v{T}, 7, {vL}", f"v_cmp_gt_u32 {mT}, 7, v{T}", f"v_min_u32 v{T}, 6, v{T}",
                f"s_lshl_b32 {t0}, {sB}, 2", f"s_add_u32 {t0}, {t0}, {sJ}", f"s_sub_u32 {t0}, {t0}, 28",
                f"s_mul_i32 {t1}, {t0}, 14336", f"s_mul_i32 {t2}, {sW}, 112", f"s_add_u32 {t1}, {t1}, {t2}",
                f"v_lshrrev_b32 v{T+1}, 3, {vL}", f"v_mul_u32_u24 v{T+2}, 448, v{T+1}", f"v_lshl_add_u32 v{T+2}, v{T}, 4, v{T+2}",
                f"v_add_u32 v{T+2}, {t1}, v{T+2}", f"v_mov_b32 v{T+1}, {OOB}", f"v_cndmask_b32 {vGA}, v{T+1}, v{T+2}, {mT}",
                f"v_cmp_gt_u32 vcc, 32, {vL}", f"v_cndmask_b32 {vWG}, v{T+1}, {vGA}, vcc",
                f"v_lshrrev_b32 v{T+1}, 5, {vL}", f"v_lshlrev_b32 v{T+1}, 2, v{T+1}", f"v_lshl_add_u32 v{T}, v{T}, 3, v{T+1}",
                f"s_mul_i32 {t0}, {t0}, 224", f"s_mul_i32 {t2}, {sW}, 56", f"s_add_u32 {t0}, {t0}, {t2}",
                f"v_add_u32 v{VS}, {t0}, v{T}", f"v_add_u32 v{VS+1}, {MODBUF}, v{VS}", f"v_add_u32 v{VS+2}, {24*896}, v{VS+1}"]
        c_issue, c_verify = poll(P, c, [f"global_load_dword v{cX+1}, v{VS}, {sp(pX)}",
                                        f"buffer_load_dword v{cGA+1}, v{VS+1}, {srd(WS_)}, 0 offen sc1",
                                        f"buffer_load_dword v{cCB+1}, v{VS+2}, {srd(WS_)}, 0 offen sc1"],
                                 [f"v_max_u32 v{cGA}, v{cGA+1}, v{cCB+1}", f"v_cmp_eq_u32 vcc, -1, v{cGA}"], "mod", pre=cpre)

        def consts():
            c_verify()
            P(f"v_and_b32 v{T}, 16, {vL}")
            for r in (cGA, cX, cCB):
                P(f"v_lshrrev_b32 v{r}, v{T}, v{r+1}", f"v_lshlrev_b32 v{r}, 16, v{r}")
            P(f"v_lshrrev_b32 v{T}, 3, v{T}", f"v_add_u32 v{cSB}, v{VS}, v{T}")
    assert c["C0"] > nm + 1
    at(c["C0"], c_issue)
    at(done_slot(c["C0"] + 1), consts)
    if not svc:
        a0, a1 = X3 + 1, 128
        for i in range(14):
            at(a0 + (a1 - a0) * i // 14, lin_load(W2_, "w2", sWST, i, 0))
    at(127, of_issue)

    for n in range(first, 128):
        if n - depth(n) >= first:
            P.wait(sop[n - depth(n)])
        if n < 0:
            m, i = (n + 28) // 14, (n + 28) % 14
            P(f"s_add_u32 {t0}, {sWST if m else sSL1}, {1024*i}", f"s_mov_b32 m0, {t0}", f"s_mov_b32 {t1}, {8*i*5376 + 896*m}")
            sop[n] = P.vm(f"buffer_load_dwordx4 {vWG}, {srd(WA_)}, {t1} offen {c['wflag']} lds")
        elif n < 64:
            Tn, j = n >> 3, n & 7
            off = 1056 * j - 1024 * (j & 3)
            base = sSL1 if Tn & 1 else sSL0
            if off:
                P(f"s_add_u32 m0, {base}, {off}")
            else:
                P(f"s_mov_b32 m0, {base}")
            sop[n] = P.vm(f"buffer_load_dwordx4 {vKG}, {srd(K_)}, s{BLK + (n >> 2)} offen offset:{1024*(j & 3)} {c['kflag']} lds")
        else:
            vi_ = n - 64
            if vi_ & 15 == 0:
                P(f"s_add_u32 {t0}, {sS}, {(vi_ >> 4) + 1}", f"s_and_b32 {t0}, {t0}, 3", f"s_lshl_b32 {t0}, {t0}, 7",
                  f"v_add_u32 {vV}, {t0}, {vVB}")
            sop[n] = P.vm(f"buffer_load_dwordx4 {ar(4*(vi_ & 31), 4)}, {vV}, {srd(V_)}, s{BLK + (vi_ & 15)} offen {c['kflag']}")
        for f in ev.pop(n, []):
            f()
        if n == 100:
            stamp(1)
    assert not ev, ev.keys()

    P(f"s_lshl_b32 {t0}, {sHKV}, 2", f"s_add_u32 {t0}, {t0}, {sS}", f"s_mul_i32 {t0}, {t0}, 448", f"s_add_u32 s{BLK+8}, {t0}, {PBUF}",
      f"s_mul_i32 {t0}, {sJ}, 448", f"s_add_u32 s{BLK+9}, {t0}, {FBUF}",
      f"s_lshl_b32 {t0}, {sW}, 9", f"s_add_u32 {t0}, {t0}, {ORED}", f"v_add_u32 v{T+7}, {t0}, {vOL}")
    if not svc:
        for i in range(8):
            P(f"s_add_u32 {t0}, {sHKV}, {i+1}", f"s_and_b32 {t0}, {t0}, 7", f"s_mul_i32 s{BLK+i}, {t0}, 1792")
    while vi < 64:
        pv(vi)
        vi += 1
    stamp(2)
    of_verify()
    P.waitall()
    d = VACC + 8
    pv_merge(3)
    for i in range(4):
        P(f"v_add_f32 v{d+i}, v{d+i}, v{VD+i}")
    P(f"s_mov_b64 exec, {mN8}", f"ds_write_b128 v{T+7}, {vr(d,4)}", "s_mov_b64 exec, -1")
    P.lgk()
    P("s_barrier")
    P(f"ds_read2st64_b64 {vr(VD,4)}, {vOR} offset0:0 offset1:1", f"ds_read2st64_b64 {vr(VD+4,4)}, {vOR} offset0:2 offset1:3")
    P.lgk(1)
    P(f"v_add_f32 v{VD}, v{VD}, v{VD+2}", f"v_add_f32 v{VD+1}, v{VD+1}, v{VD+3}")
    P.lgk(0)
    P(f"v_add_f32 v{VD+4}, v{VD+4}, v{VD+6}", f"v_add_f32 v{VD+5}, v{VD+5}, v{VD+7}",
      f"v_add_f32 v{VD}, v{VD}, v{VD+4}", f"v_add_f32 v{VD+1}, v{VD+1}, v{VD+5}", f"v_cvt_pk_bf16_f32 v{VD}, v{VD}, v{VD+1}")
    OB, OD = VA, VA + 16

    def bc(dst, src, n):
        P(f"v_mov_b32_dpp v{dst}, v{src} row_newbcast:{n} {FULL}")

    def gemv_out(nks, breg, areg, dreg, soff, bsrc):
        mm = lambda t, ks: P(f"v_mfma_f32_16x16x32_bf16 {vr(dreg+4*t,4)}, {ar(areg(ks,t),4)}, {vr(breg+4*ks,4)}, {'0' if ks == 0 else vr(dreg+4*t,4)}")
        st = lambda t: P.vm(f"buffer_store_dwordx4 {vr(dreg+4*t,4)}, {vST}, {srd(WS_)}, {soff} offen offset:{64*t} sc1")
        for k in range(4):
            bsrc(k)
        for ks in range(nks):
            if ks + 1 < nks:
                bsrc(4 * ks + 4); bsrc(4 * ks + 5)
            mm(0, ks)
            if ks + 1 < nks:
                bsrc(4 * ks + 6); bsrc(4 * ks + 7)
            mm(1, ks)
        lag = 8 // nks
        nst = 0
        for t in range(2, 7):
            for ks in range(nks):
                mm(t, ks)
            while nst <= t - lag:
                st(nst); nst += 1
        while nst < 7:
            st(nst); nst += 1

    gemv_out(4, OB, wo_reg, OD, f"s{BLK+8}", lambda k: bc(OB + k, VD, k))
    stamp(3)

    if not svc:
        G = VQ
        ld = lambda i: f"buffer_load_dwordx4 {vr(G+4*i,4)}, {vGA}, {srd(WS_)}, s{BLK + (i >> 1)} offen offset:{896*(i & 1)} sc1"
        for i in range(16):
            P.vm(ld(i))
        tr_rows(AREA_B, w2_reg, 0, 28)
        P(f"v_mov_b32 v{T+4}, 0", f"v_mov_b32 v{T+5}, 0", f"s_lshl_b32 {t0}, {sW}, 4", f"s_add_u32 {t0}, {t0}, {STAT}",
          f"v_mov_b32 v{T+7}, {t0}", f"v_and_b32 v{T+3}, 3, {vL}", f"v_lshlrev_b32 v{T+3}, 4, v{T+3}", f"v_add_u32 {vKR0}, {STAT}, v{T+3}",
          f"s_lshl_b32 {t0}, {sW}, 9", f"s_add_u32 {t0}, {t0}, {GU}", f"v_lshl_add_u32 {vKR1}, {vL}, 3, {t0}",
          f"v_lshlrev_b32 {vKG}, 3, {vL}", f"v_add_u32 {vKG}, {GU}, {vKG}",
          f"s_mov_b32 s{BLK+10}, 0x42e00000", f"s_mov_b32 s{BLK+12}, 0", f"s_mov_b32 s{BLK+13}, 0x80000000")
        top, out = P.label("g_top"), P.label("g_out")
        P(f"{top}:", "s_waitcnt vmcnt(0)")
        P.done = P.nvm - 1
        for g in range(4):
            P(f"v_max3_u32 v{T+g}, v{G+16*g}, v{G+16*g+4}, v{G+16*g+8}")
        for g in range(4):
            P(f"v_max_u32 v{T+g}, v{T+g}, v{G+16*g+12}")
        P(f"v_max3_u32 v{T+6}, v{T}, v{T+1}, v{T+2}", f"v_max_u32 v{T+6}, v{T+6}, v{T+3}", f"v_cmp_eq_u32 vcc, -1, v{T+6}")
        slow = P.label("g_slow")
        P(f"s_cbranch_vccnz {slow}", f"{out}:")
        P.cold += [f"{slow}:", f"s_add_u32 {sSPIN}, {sSPIN}, 1", f"s_cmp_gt_u32 {sSPIN}, {c['spin']}", f"s_cbranch_scc1 {out}"]
        for g in range(4):
            sk = P.label("g_skip")
            P.cold += [f"v_cmp_eq_u32 vcc, -1, v{T+g}", f"s_cbranch_vccz {sk}"] + [ld(4*g + i) for i in range(4)] + [f"{sk}:"]
        P.cold += [f"s_branch {top}"]
        stamp(4)
        for step in (8, 4, 2, 1):
            for i in range(step):
                for k in (0, 2):
                    P(f"v_pk_add_f32 {vr(G+4*i+k,2)}, {vr(G+4*i+k,2)}, {vr(G+4*(i+step)+k,2)}")
        a, b = v(G), v(G+1)
        P(f"v_permlane32_swap_b32 v{G}, v{G+2}", f"v_permlane32_swap_b32 v{G+1}, v{G+3}",
          f"v_add_f32 {a}, {a}, v{G+2}", f"v_add_f32 {b}, {b}, v{G+3}")
        rb(P, a, a); rb(P, b, b)
        P(f"v_mul_f32 {a}, {a}, v{cGA}", f"v_mul_f32 {b}, {b}, v{cGA+1}")
        rb(P, a, a); rb(P, b, b)
        P(f"v_add_f32 {a}, {a}, v{cX}", f"v_add_f32 {b}, {b}, v{cX+1}")
        rb(P, a, a); rb(P, b, b)
        s1, s2, pv_ = v(T+4), v(T+5), v(T+6)
        d0, d1 = v(G+2), v(G+3)
        P(f"v_readfirstlane_b32 {t0}, {a}", f"s_mov_b64 exec, {mT}",
          f"v_subrev_f32 {d0}, {t0}, {a}", f"v_subrev_f32 {d1}, {t0}, {b}", f"v_add_f32 {s1}, {d0}, {d1}",
          f"v_mul_f32 {s2}, {d0}, {d0}", f"v_fmac_f32 {s2}, {d1}, {d1}", "s_mov_b64 exec, -1", f"v_mov_b32 {pv_}, {t0}")
        for ctl in ("row_ror:8 " + FULL, "row_ror:4 " + FULL, "row_ror:2 " + FULL, "row_ror:1 " + FULL,
                    "row_bcast:15 row_mask:0xa bank_mask:0xf", "row_bcast:31 row_mask:0xc bank_mask:0xf"):
            P(f"v_add_f32_dpp {s1}, {s1}, {s1} {ctl}", f"v_add_f32_dpp {s2}, {s2}, {s2} {ctl}")
        P(f"s_mov_b64 exec, s[{BLK+12}:{BLK+13}]", f"ds_write_b96 v{T+7}, {vr(T+4,3)}", "s_mov_b64 exec, -1")
        P.lgk()
        P("s_barrier")
        P(f"ds_read_b96 {vr(T+4,3)}, {vKR0}")
        P.lgk()
        mean, var, dl, rs = v(T), v(T+1), v(T+2), v(T+3)
        n112 = f"s{BLK+10}"
        P(f"v_fma_f32 {mean}, {pv_}, {n112}, {s1}",
          f"v_add_f32_dpp {mean}, {mean}, {mean} quad_perm:[1,0,3,2] {FULL}", f"v_add_f32_dpp {mean}, {mean}, {mean} quad_perm:[2,3,0,1] {FULL}",
          f"v_mul_f32 {mean}, {RN:#x}, {mean}", f"v_add_f32 {s1}, {s1}, {s1}", f"v_sub_f32 {dl}, {mean}, {pv_}",
          f"v_fma_f32 {var}, {dl}, {n112}, -{s1}", f"v_fma_f32 {var}, {var}, {dl}, {s2}")
        rb(P, mean, mean)
        P(f"v_sub_f32 {d0}, {a}, {mean}",
          f"v_add_f32_dpp {var}, {var}, {var} quad_perm:[1,0,3,2] {FULL}",
          f"v_sub_f32 {d1}, {b}, {mean}")
        rb(P, d0, d0)
        P(f"v_add_f32_dpp {var}, {var}, {var} quad_perm:[2,3,0,1] {FULL}")
        rb(P, d1, d1)
        P(f"v_mul_f32 {var}, {RN:#x}, {var}", f"v_max_f32 {var}, 0, {var}")
        rb(P, var, var)
        P(f"v_add_f32 {var}, {EPS:#x}, {var}"); rb(P, var, var)
        P(f"v_sqrt_f32 {var}, {var}"); rb(P, var, var)
        P(f"v_rcp_f32 {rs}, {var}", f"v_mul_f32 {d0}, {d0}, {rs}", f"v_mul_f32 {d1}, {d1}, {rs}")
        rb(P, d0, d0); rb(P, d1, d1)
        P(f"v_mul_f32 {d0}, {d0}, v{cCB}", f"v_mul_f32 {d1}, {d1}, v{cCB+1}")
        rb(P, d0, d0); rb(P, d1, d1)
        P(f"v_add_f32 {d0}, {d0}, v{cSB}", f"v_add_f32 {d1}, {d1}, v{cSB+1}", f"v_cvt_pk_bf16_f32 v{T}, {d0}, {d1}")
        HB, GD = VA, VQ
        for k in range(4):
            bc(HB + k, T, k)
        nb = 4
        for ks in range(4):
            for mt in range(8):
                dd = vr(GD + 4 * mt, 4)
                if ks < 3:
                    P(f"v_mfma_f32_16x16x32_bf16 {dd}, {vr(HB+4*ks,4)}, {vr(w13_reg(ks, mt >> 2, mt & 3),4)}, {'0' if ks == 0 else dd}")
                else:
                    P(f"v_mfma_f32_16x16x16_bf16 {dd}, {vr(HB+12,2)}, {vr(w13_reg(3, mt >> 2, mt & 3),2)}, {dd}")
                if nb < 14:
                    bc(HB + nb, T, nb); nb += 1
        for m in range(2):
            for t in range(1, 4):
                P(f"v_mov_b32_dpp v{GD+16*m}, v{GD+16*m+4*t} quad_perm:[0,1,2,3] row_mask:{1 << t:#x} bank_mask:0xf")
        P(f"ds_write2_b32 {vKR1}, v{GD}, v{GD+16} offset0:0 offset1:1")
        P.lgk()
        P("s_barrier")
        P(f"ds_read2st64_b64 {vr(GD,4)}, {vKG} offset0:0 offset1:1", f"ds_read2st64_b64 {vr(GD+4,4)}, {vKG} offset0:2 offset1:3")
        P.lgk(1)
        P(f"v_add_f32 v{GD}, v{GD}, v{GD+2}", f"v_add_f32 v{GD+1}, v{GD+1}, v{GD+3}")
        P.lgk(0)
        g_, u_, e_ = v(GD), v(GD+1), v(GD+2)
        P(f"v_add_f32 v{GD+4}, v{GD+4}, v{GD+6}", f"v_add_f32 v{GD+5}, v{GD+5}, v{GD+7}",
          f"v_add_f32 {g_}, {g_}, v{GD+4}", f"v_add_f32 {u_}, {u_}, v{GD+5}")
        rb(P, g_, g_)
        P(f"v_mul_f32 {e_}, {LOG2E | 0x80000000:#x}, {g_}", f"v_exp_f32 {e_}, {e_}")
        rb(P, u_, u_)
        P(f"v_add_f32 {e_}, 1.0, {e_}", f"v_rcp_f32 {e_}, {e_}", f"v_mul_f32 {g_}, {g_}, {e_}")
        rb(P, g_, g_)
        P(f"v_mul_f32 {g_}, {g_}, {u_}", f"v_mov_b32_dpp {u_}, {g_} quad_perm:[1,0,3,2] {FULL}", f"v_cvt_pk_bf16_f32 {g_}, {g_}, {u_}")
        gemv_out(2, VA, w2_reg, VS, f"s{BLK+9}", lambda k: bc(VA + k, GD, 2 * k))
        stamp(5)
    else:
        G = VQ

        def gather(buf, name, last):
            ld = [f"s_mov_b32 {t0}, {buf}", f"buffer_load_dwordx4 {vr(G,4)}, {vGA}, {srd(WS_)}, {t0} offen sc1",
                  f"buffer_load_dwordx4 {vr(G+4,4)}, {vGA}, {srd(WS_)}, {t0} offen offset:3584 sc1",
                  f"s_mov_b32 {t1}, {buf + 7168}", f"buffer_load_dwordx4 {vr(G+8,4)}, {vGA}, {srd(WS_)}, {t1} offen sc1",
                  f"buffer_load_dwordx4 {vr(G+12,4)}, {last}, {srd(WS_)}, {t1} offen offset:3584 sc1"]
            iss, ver = poll(P, c, ld, [f"v_max3_u32 v{T}, v{G}, v{G+4}, v{G+8}", f"v_max_u32 v{T}, v{T}, v{G+12}",
                                       f"v_cmp_eq_u32 vcc, -1, v{T}"], name)
            iss(); ver()
            for step in (2, 1):
                for i in range(step):
                    for k in (0, 2):
                        P(f"v_pk_add_f32 {vr(G+4*i+k,2)}, {vr(G+4*i+k,2)}, {vr(G+4*(i+step)+k,2)}")
            P(f"v_permlane32_swap_b32 v{G}, v{G+2}", f"v_permlane32_swap_b32 v{G+1}, v{G+3}",
              f"v_add_f32 v{G}, v{G}, v{G+2}", f"v_add_f32 v{G+1}, v{G+1}, v{G+3}",
              f"v_permlane16_swap_b32 v{G}, v{G+1}", f"v_add_f32 v{G}, v{G}, v{G+1}",
              f"v_add_f32_dpp v{G}, v{G}, v{G} row_ror:8 {FULL}")
            rb(P, v(G), v(G))
        gather(PBUF, "p", vGA)
        P(f"v_mul_f32 v{G}, v{G}, v{cGA}"); rb(P, v(G), v(G))
        P(f"v_add_f32 v{cX}, v{G}, v{cX}"); rb(P, v(cX), v(cX))
        P(f"s_and_b64 {mT}, {mT}, {mN8}")
        stamp(4)
        gather(FBUF, "f", vWG)
        P(f"v_mul_f32 v{G}, v{G}, v{cCB}"); rb(P, v(G), v(G))
        P(f"v_add_f32 v{G}, v{G}, v{cX}", f"v_cvt_pk_bf16_f32 v{G}, v{G}, v{G}", f"s_mov_b64 exec, {mT}")
        P.vm(f"global_store_short v{cSB}, v{G}, {sp(pOUT)}")
        P("s_mov_b64 exec, -1")
        stamp(5)
    if c["stamps"]:
        P("s_waitcnt vmcnt(0)")
        stamp(6)
        P(f"s_getreg_b32 {t1}, hwreg(HW_REG_XCC_ID, 0, 4)", "v_accvgpr_write_b32 a240, s0", f"v_accvgpr_write_b32 a247, {t1}",
          f"v_accvgpr_write_b32 a248, {sSPIN}",
          f"s_lshl_b32 {t0}, s2, 2", f"s_add_u32 {t0}, {t0}, {sW}", f"s_lshl_b32 {t0}, {t0}, 6", f"s_add_u32 {t0}, {t0}, {STAMP}",
          f"v_mov_b32 v{T}, {t0}", "s_mov_b64 exec, 1", "s_nop 1",
          f"global_store_dwordx4 v{T}, a[240:243], {sp(pWS)}", f"global_store_dwordx4 v{T}, a[244:247], {sp(pWS)} offset:16",
          f"global_store_dwordx4 v{T}, a[248:251], {sp(pWS)} offset:32")
    P("s_endpgm")


if __name__ == "__main__":
    kw = {}
    for a in sys.argv[2:]:
        k, val = a.split("=", 1)
        kw[k] = eval(val)
    open(sys.argv[1], "w").write(build(**kw))
```

```python
import sys, os
sys.path.insert(0, os.path.dirname(os.path.abspath(__file__)))
from asmlib import Prog, pad_hazards

KN = "adaLN_cond__sliding_block_cached__glu_gated_swiglu__decode_kernel"

QBUF, HBUF, MODBUF, MLBUF, PH1END = 0x0, 0x80000, 0x82000, 0x89000, 0x8F000
PBUF, FBUF, OBUF, WSEND = 0x90000, 0x100000, 0x170000, 0x1D0000
STAMP = 0x400000
AREA_A, AREA_B, SLOT0, SCR = 0, 57344, 114688, 148480
REG_W = 14336
WQOFF = 8448
HQ, QL, OPART, ORED, STAT, GU = SCR, SCR + 2048, SCR + 3072, SCR + 9216, SCR + 11264, SCR + 11520
LDS_BYTES = SCR + 13568
OOB = 0x40000000
LOG2E = 0x3FB8AA3B
CSC = 0x3DB8AA3B
EPS = 0x3727C5AC
RN = 0x3B124925

sW, sHKV, sS, sB, sJ = "s3", "s4", "s5", "s6", "s7"
K_, V_, WS_, WA_, WB_, WO_, W2_, WQ_ = 8, 12, 16, 20, 24, 28, 32, 36
BLK = 40
sSL0, sSL1, sWST = "s56", "s57", "s58"
t0, t1, t2, t3, t4 = "s59", "s60", "s61", "s62", "s63"
pX, pK, pV, pWQ, pWO, pW1, pW3, pW2, pC, pWM, pOUT, pDBG, pWS = 64, 66, 68, 70, 72, 76, 78, 80, 82, 84, 86, 88, 90
sSPIN, sG = "s92", "s93"
mN8, mH, mPAR, mT = "s[94:95]", "s[96:97]", "s[98:99]", "s[100:101]"
srd = lambda r: f"s[{r}:{r+3}]"
sp = lambda r: f"s[{r}:{r+1}]"

vL, vLIN, vKG, vKR0, vKR1, vV, vVB, vWG, vWR, vWOR, vM0, vM1, vOL, vST, vGA, vOR = ["v%d" % i for i in range(16)]
cGA, cX, cCB, cSB = 16, 18, 20, 22
T = 24
VQ, VS, VD, VA, VACC, VW = 32, 64, 80, 96, 128, 144
v = lambda i: f"v{i}"
vr = lambda i, n: f"v[{i}:{i+n-1}]"
ar = lambda i, n: f"a[{i}:{i+n-1}]"
FULL = "row_mask:0xf bank_mask:0xf"


DEF = dict(D=5, DV=5, DI=8, DIEND=40, rot=(1, 1, 2), F0=30, H0=40, Q0=53, M0=78, C0=90, X1=92,
           W13=(10, 52), spin=1 << 20, stamps=False, pref=True, w2late=True, kflag="nt", wflag="nt",
           mid=(8, 24, 40, 48, 62, 76, 88))
MIDS = (66, 68, 70, 76, 78, 82, 84)


def build(**kw):
    c = dict(DEF)
    c.update(kw)
    head = Prog()
    prologue(head, c)
    N, I = Prog(), Prog()
    I.uid = 1000
    program(N, c, False)
    program(I, c, True)
    lines = head.L + N.L + N.cold + ["L_progI:"] + I.L + I.cold + ["L_end:", "s_endpgm"]
    lines = pad_hazards(lines)
    body = "\n".join(("" if l.endswith(":") else "    ") + l for l in lines)
    return HEADER + body + "\n" + FOOTER


HEADER = f"""; Fused decode step: adaLN modulation -> q projection -> sliding-window GQA attention -> wo -> adaLN -> SwiGLU FFN.
; @launch grid=(256,1,1) block=(256,1,1) lds={LDS_BYTES}
.amdgcn_target "amdgcn-amd-amdhsa--gfx950"
.text
.globl {KN}
.p2align 8
.type {KN},@function
{KN}:
"""
FOOTER = f"""L_codeend:
.section .rodata,"a"
.p2align 6
.amdhsa_kernel {KN}
  .amdhsa_next_free_vgpr 512
  .amdhsa_next_free_sgpr 102
  .amdhsa_accum_offset 256
  .amdhsa_group_segment_fixed_size 0
  .amdhsa_kernarg_size 112
  .amdhsa_user_sgpr_count 2
  .amdhsa_user_sgpr_kernarg_segment_ptr 1
  .amdhsa_system_sgpr_workgroup_id_x 1
  .amdhsa_float_denorm_mode_32 3
.end_amdhsa_kernel
"""


def mk_srd(P, r, ptr, off, nrec):
    if off is None:
        P(f"s_mov_b32 s{r}, s{ptr}", f"s_mov_b32 s{r+1}, s{ptr+1}")
    else:
        P(f"s_add_u32 s{r}, s{ptr}, {off}", f"s_addc_u32 s{r+1}, s{ptr+1}, 0")
    P(f"s_mov_b32 s{r+2}, {nrec}", f"s_mov_b32 s{r+3}, 0x20000")


def prologue(P, c):
    a, b_, g_ = c["rot"]
    P("s_cmp_ge_u32 s2, 256", "s_cbranch_scc1 L_end",
      "s_load_dwordx16 s[64:79], s[0:1], 0", "s_load_dwordx8 s[80:87], s[0:1], 64", "s_load_dwordx4 s[88:91], s[0:1], 96")
    if c["stamps"]:
        P("s_memrealtime s[0:1]")
    P("v_lshrrev_b32 v1, 6, v0", "v_and_b32 v0, 63, v0", f"v_readfirstlane_b32 {sW}, v1",
      f"s_and_b32 {sHKV}, s2, 7", f"s_bfe_u32 {sS}, s2, 0x20003", f"s_lshr_b32 {sB}, s2, 5",
      f"v_lshrrev_b32 {vKG}, 5, {vL}", f"v_xor_b32 {vKG}, {vKG}, {vL}", f"v_lshlrev_b32 {vKG}, 4, {vKG}",
      f"v_lshlrev_b32 {vLIN}, 4, {vL}",
      f"s_lshl_b32 {t0}, {sB}, 3", f"s_add_u32 {t0}, {t0}, {sHKV}", f"s_lshl_b32 {t0}, {t0}, 6",
      f"s_lshl_b32 {t1}, {sS}, 2", f"s_add_u32 {t1}, {t1}, {sW}", f"s_add_u32 {t0}, {t0}, {t1}",
      f"s_add_u32 {t0}, {t0}, 48", f"s_lshl_b32 {t0}, {t0}, 16",
      f"s_mul_i32 {t1}, {sHKV}, {a}", f"s_mul_i32 {t2}, {sW}, {b_}", f"s_add_u32 {t1}, {t1}, {t2}",
      f"s_lshr_b32 {t2}, s2, 3", f"s_mul_i32 {t2}, {t2}, {g_}", f"s_add_u32 {t1}, {t1}, {t2}",
      f"s_and_b32 {t1}, {t1}, 15", f"s_lshl_b32 s{BLK}, {t1}, 12",
      f"s_mul_i32 {sSL0}, {sW}, 8448", f"s_add_u32 {sSL0}, {sSL0}, {SLOT0}",
      f"s_mul_i32 {sSL1}, {sW}, {REG_W}", f"s_add_u32 {sWST}, {sSL1}, {AREA_B}",
      f"s_and_b32 {sJ}, s2, 31", f"s_and_b32 {t2}, {sB}, 1", f"s_lshl_b32 {t2}, {t2}, 2", f"s_xor_b32 {t2}, {t2}, {sJ}",
      f"s_cmp_eq_u32 {sS}, 3", f"s_cselect_b32 {sJ}, {t2}, {sJ}",
      f"s_mov_b32 {sSPIN}, 0",
      "s_waitcnt lgkmcnt(0)")
    mk_srd(P, K_, pK, t0, 0x10000)
    mk_srd(P, V_, pV, t0, 0x10000)
    P(f"s_cmp_ge_u32 {sJ}, 28", "s_cbranch_scc1 L_progI")


def rb(P, d, s):
    P(f"v_cvt_pk_bf16_f32 {d}, 0, {s}")


def poll(P, c, loads, check, name, pre=()):
    st = {}

    def issue():
        P(*pre)
        for l in loads:
            if l.startswith(("buffer_", "global_")):
                st["op"] = P.vm(l)
            else:
                P(l)

    def verify():
        slow, back = P.label(name + "_slow"), P.label(name + "_ok")
        P.wait(st["op"])
        P(*check)
        P(f"s_cbranch_vccnz {slow}", f"{back}:")
        P.cold += [f"{slow}:", f"s_add_u32 {sSPIN}, {sSPIN}, 1", f"s_cmp_gt_u32 {sSPIN}, {c['spin']}",
                   f"s_cbranch_scc1 {back}"] + list(loads) + ["s_waitcnt vmcnt(0)"] + list(check) + \
                  [f"s_cbranch_vccnz {slow}", f"s_branch {back}"]
    return issue, verify


def program(P, c, svc):
    D, DV = c["D"], c["DV"]
    ev = {}
    stamp_n = [0]

    def at(n, f):
        ev.setdefault(n, []).append(f)

    def stamp(idx):
        if c["stamps"]:
            P("s_memrealtime s[74:75]", "s_waitcnt lgkmcnt(0)", f"v_accvgpr_write_b32 a{240+idx}, s74")

    first = -28 if svc else 0
    depth = lambda n: (c["DI"] if (svc and n < c["DIEND"]) else (D if n < 64 else DV))
    sop = {}

    def done_slot(n):
        m = n + 1
        while m - depth(m) < n:
            m += 1
        return m

    def setup_blocks():
        for t in range(1, 16):
            P(f"s_add_u32 s{BLK+t}, s{BLK+t-1}, 0x1000", f"s_and_b32 s{BLK+t}, s{BLK+t}, 0xffff")

    clr = {}

    def ws_srd():
        mk_srd(P, WS_, pWS, None, WSEND)

    def flag_store(off):
        mk_srd(P, W2_, pDBG, None, 256)
        P(f"s_lshl_b32 {t0}, {sW}, 6", f"v_add_u32 v{T}, {t0}, {vL}", f"v_lshlrev_b32 v{T}, 16, v{T}",
          f"s_add_u32 {t0}, {sG}, {off}", f"v_add_u32 v{T}, {t0}, v{T}", f"v_mov_b32 v{T+1}, 1")
        return f"buffer_store_byte v{T+1}, v{T}, {srd(W2_)}, 0 offen sc1"

    def clears1():
        skip = P.label("noclr")
        P(f"s_cmp_lt_u32 {sG}, 21", f"s_cbranch_scc1 {skip}")
        for i in range(4):
            P(f"v_mov_b32 v{T+4+i}, -1")
        P(f"s_sub_u32 {t0}, {sG}, 21", f"s_lshl_b32 {t0}, {t0}, 2", f"s_add_u32 {t0}, {t0}, {sW}", f"s_lshl_b32 {t0}, {t0}, 10")
        for i in range(13):
            P(f"buffer_store_dwordx4 {vr(T+4,4)}, {vLIN}, {srd(WS_)}, {t0} offen sc1", f"s_add_u32 {t0}, {t0}, {44*1024}")
        st = flag_store(0)
        P("s_waitcnt vmcnt(0)", "s_barrier", st, f"{skip}:")

    def clear2(i):
        def f():
            if i == 0:
                for k in range(4):
                    P(f"v_mov_b32 v{VACC+k}, -1")
            P(f"s_lshl_b32 {t0}, {sG}, 2", f"s_add_u32 {t0}, {t0}, {sW}", f"s_lshl_b32 {t0}, {t0}, 10", f"s_add_u32 {t0}, {t0}, {PBUF + i*128*1024}")
            clr["op"] = P.vm(f"buffer_store_dwordx4 {vr(VACC,4)}, {vLIN}, {srd(WS_)}, {t0} offen sc1")
        return f

    def setup_common():
        P(f"s_mov_b32 s94, 0x00ff00ff", "s_mov_b32 s95, 0x00ff00ff", "s_mov_b32 s96, 0xf0f0f0f0", "s_mov_b32 s97, 0xf0f0f0f0",
          "s_mov_b32 s98, 0xff00ff00", "s_mov_b32 s99, 0xff00ff00")
        x0, x1, x2 = v(T), v(T+1), v(T+2)
        P(f"v_bfe_u32 {x0}, {vL}, 1, 1", f"v_bfe_u32 {x1}, {vL}, 2, 2", f"v_lshl_add_u32 {x0}, {x0}, 2, {x1}",
          f"v_mul_u32_u24 {x0}, 1056, {x0}", f"v_and_b32 {x1}, 1, {vL}", f"v_lshl_add_u32 {x0}, {x1}, 9, {x0}",
          f"v_lshrrev_b32 {x2}, 4, {vL}", f"v_xor_b32 {x2}, {x2}, {x1}", f"v_lshl_add_u32 {x0}, {x2}, 4, {x0}",
          f"v_add_u32 {vKR0}, {sSL0}, {x0}", f"v_add_u32 {vKR1}, {sSL1}, {x0}")
        P(f"v_lshrrev_b32 {x0}, 3, {vL}", f"v_and_b32 {x1}, 7, {vL}", f"v_lshlrev_b32 {x1}, 4, {x1}",
          f"v_lshl_add_u32 {vVB}, {x0}, 9, {x1}")
        P(f"v_and_b32 {x0}, 1, {vL}", f"v_lshlrev_b32 {x0}, 4, {x0}", f"v_mov_b32 {x1}, 0xffff", f"v_lshlrev_b32 {x0}, {x0}, {x1}",
          f"v_and_b32 {x1}, 2, {vL}", f"v_cmp_eq_u32 vcc, 0, {x1}", f"v_cndmask_b32 {vM0}, 0, {x0}, vcc",
          f"v_cndmask_b32 {vM1}, {x0}, 0, vcc")
        P(f"v_bfe_u32 {x0}, {vL}, 4, 1", f"v_and_b32 {x1}, 7, {vL}", f"v_lshlrev_b32 {x1}, 5, {x1}",
          f"v_lshl_add_u32 {x0}, {x0}, 8, {x1}", f"v_lshrrev_b32 {x1}, 5, {vL}", f"v_lshl_add_u32 {vOL}, {x1}, 4, {x0}")

    def setup_tail():
        x0, x1, x2 = v(T), v(T+1), v(T+2)
        P(f"v_lshrrev_b32 {x0}, 4, {vL}", f"v_bfe_u32 {x1}, {vL}, 2, 2", f"v_lshl_add_u32 {x0}, {x0}, 4, {x1}",
          f"v_mul_u32_u24 {x0}, 896, {x0}", f"v_and_b32 {x1}, 3, {vL}", f"v_lshl_add_u32 {x0}, {x1}, 3, {x0}",
          f"s_mul_i32 {t0}, {sW}, 224", f"v_add_u32 {vWOR}, {t0}, {x0}")
        P(f"v_bfe_u32 {x0}, {vL}, 3, 1", f"v_lshrrev_b32 {x1}, 4, {vL}", f"v_lshlrev_b32 {x1}, 6, {x1}",
          f"v_lshl_add_u32 {x0}, {x0}, 8, {x1}", f"v_and_b32 {x1}, 7, {vL}", f"v_lshl_add_u32 {x0}, {x1}, 3, {x0}",
          f"v_add_u32 {vOR}, {ORED}, {x0}")
        P(f"s_lshl_b32 {t0}, {sB}, 2", f"s_add_u32 {t0}, {t0}, {sW}", f"s_mul_i32 {t0}, {t0}, 14336",
          f"v_and_b32 {x0}, 15, {vL}", f"v_cmp_eq_u32 vcc, 0, {x0}", f"v_add_u32 {x0}, {t0}, {vL}", f"v_mov_b32 {x1}, {OOB}",
          f"v_cndmask_b32 {vST}, {x1}, {x0}, vcc")
        P(f"s_lshl_b32 {t0}, {sHKV}, 9", f"s_lshl_b32 {t1}, {sS}, 6", f"s_add_u32 {t0}, {t0}, {t1}",
          f"s_mul_i32 {t0}, {t0}, 896", f"s_add_u32 {t0}, {t0}, {sSL1}")
        mk_srd(P, WO_, pWO, t0, 256 * 896 + REG_W)

    def prefetch_code():
        if not c["pref"]:
            return
        lab = P.label("pc")
        P(f"s_getpc_b64 {mT}", f"{lab}:",
          f"s_sub_u32 s100, s100, {lab}-{KN}", "s_subb_u32 s101, s101, 0",
          f"s_lshr_b32 {t0}, s2, 3", f"s_lshl_b32 {t0}, {t0}, 2", f"s_add_u32 {t0}, {t0}, {sW}", f"s_lshl_b32 {t0}, {t0}, 8",
          f"v_and_b32 v{T}, 1, {vL}", f"v_lshl_add_u32 v{T}, v{T}, 7, {t0}", f"v_min_u32 v{T}, L_codeend-{KN}-4, v{T}",
          f"v_mov_b32 v{T+1}, s101", f"v_add_co_u32 v{T}, vcc, s100, v{T}", "s_nop 1", f"v_addc_co_u32 v{T+1}, vcc, 0, v{T+1}, vcc")
        P.vm(f"global_load_dword {vGA}, {vr(T,2)}, off")

    wq = {}

    def wq_setup():
        P(f"s_mul_i32 {t0}, {sS}, {112*8192}", f"s_lshl_b32 {t1}, {sHKV}, 10", f"s_add_u32 {t0}, {t0}, {t1}",
          f"s_lshl_b32 {t1}, {sB}, 7", f"s_add_u32 {t0}, {t0}, {t1}")
        mk_srd(P, WQ_, pWQ, t0, 111 * 8192 + 128)
        P(f"v_lshrrev_b32 v{T}, 3, {vL}", f"v_and_b32 v{T+1}, 7, {vL}", f"v_lshlrev_b32 v{T+1}, 4, v{T+1}",
          f"v_lshl_add_u32 v{T}, v{T}, 13, v{T+1}", f"s_lshl_b32 {t0}, {sW}, 18", f"v_add_u32 {vV}, {t0}, v{T}")

    def wq_load(i):
        def f():
            P(f"s_add_u32 {t0}, {sSL1}, {WQOFF + 1024*i}", f"s_mov_b32 m0, {t0}")
            wq["op"] = P.vm(f"buffer_load_dwordx4 {vV}, {srd(WQ_)}, 0 offen {c['wflag']} lds")
            P(f"v_add_u32 {vV}, 0x10000, {vV}")
        return f

    fl_issue, fl_verify = poll(P, c, [f"global_load_ubyte v{T+7}, v{T+6}, {sp(pDBG)} sc1"],
                               [f"v_cmp_ne_u32 vcc, 1, v{T+7}"], "flags",
                               pre=[f"v_min_u32 v{T+6}, 10, {vL}", f"v_add_u32 v{T+6}, 21, v{T+6}"])
    f2_issue, f2_verify = poll(P, c, [f"global_load_ubyte v{VS+5}, v{VS+4}, {sp(pDBG)} offset:128 sc1"],
                               [f"v_cmp_ne_u32 vcc, 1, v{VS+5}"], "flags2",
                               pre=[f"v_and_b32 v{VS+4}, 31, {vL}"])

    h_issue, h_verify = poll(P, c, [f"buffer_load_dwordx2 {vr(VD,2)}, v{VD+2}, {srd(WS_)}, 0 offen sc1"],
                             [f"v_cmp_eq_u32 vcc, -1, v{VD}"], "h",
                             pre=[f"s_mul_i32 {t0}, {sS}, 1792", f"s_mul_i32 {t1}, {sW}, 448", f"s_add_u32 {t0}, {t0}, {t1}",
                                  f"s_add_u32 {t0}, {t0}, {HBUF}", f"v_min_u32 v{VD+3}, 55, {vL}",
                                  f"v_lshl_add_u32 v{VD+2}, v{VD+3}, 3, {t0}", f"s_add_u32 {t1}, {t1}, {HQ}",
                                  f"v_lshl_add_u32 v{VD+3}, v{VD+3}, 3, {t1}"])

    def q_unit():
        h_verify()
        P(f"ds_write_b64 v{VD+3}, {vr(VD,2)}")
        x0, x1, x2 = v(T), v(T+1), v(T+2)
        P(f"v_lshrrev_b32 {x0}, 2, {vL}", f"v_and_b32 {x1}, 3, {vL}", f"v_lshlrev_b32 {x1}, 3, {x1}",
          f"v_lshl_add_u32 {x0}, {x0}, 7, {x1}", f"s_lshl_b32 {t0}, {sW}, 5", f"v_add_u32 {x0}, {t0}, {x0}",
          f"v_lshrrev_b32 {x1}, 4, {vL}", f"v_and_b32 {x2}, 7, {vL}", f"v_lshlrev_b32 {x2}, 3, {x2}",
          f"v_lshl_add_u32 {x1}, {x1}, 6, {x2}", f"v_add_u32 {x1}, {HQ}, {x1}")
        P.wait(wq["op"])
        if svc:
            P.wait(clr["op"])
        P.lgk()
        P("s_barrier")
        for i in range(7):
            P(f"ds_read_b64_tr_b16 {vr(VA+2*i,2)}, {x0} offset:{REG_W*(i>>1) + WQOFF + 2048*(i&1)}",
              f"ds_read_b64 {vr(VA+16+2*i,2)}, {x1} offset:{256*i}")
        P(f"s_lshl_b32 {t0}, {sHKV}, 16", f"s_lshl_b32 {t1}, {sS}, 11", f"s_add_u32 {t0}, {t0}, {t1}",
          f"s_lshl_b32 {t1}, {sB}, 8", f"s_add_u32 {t0}, {t0}, {t1}", f"s_lshl_b32 {t1}, {sW}, 6", f"s_add_u32 {t0}, {t0}, {t1}",
          f"v_and_b32 {x2}, 15, {vL}", f"v_lshlrev_b32 {x2}, 13, {x2}", f"v_and_b32 v{T+3}, 48, {vL}",
          f"v_add3_u32 {x2}, {x2}, v{T+3}, {t0}", f"v_mov_b32 v{T+3}, {OOB}", f"v_cndmask_b32 {x2}, v{T+3}, {x2}, {mN8}")
        P.lgk()
        for ks in range(3):
            P(f"v_mfma_f32_16x16x32_bf16 {vr(VD,4)}, {vr(VA+4*ks,4)}, {vr(VA+16+4*ks,4)}, {'0' if ks == 0 else vr(VD,4)}")
        P(f"v_mfma_f32_16x16x16_bf16 {vr(VD,4)}, {vr(VA+12,2)}, {vr(VA+28,2)}, {vr(VD,4)}")
        P.vm(f"buffer_store_dwordx4 {vr(VD,4)}, {x2}, {srd(WS_)}, 0 offen offset:{QBUF} sc1")
        if svc:
            P.vm(flag_store(128))

    q_issue, q_verify = poll(P, c, [f"buffer_load_dwordx4 {vr(VD+4,4)}, v{VD+12}, {srd(WS_)}, 0 offen sc1",
                                    f"buffer_load_dwordx4 {vr(VD+8,4)}, v{VD+13}, {srd(WS_)}, 0 offen sc1"],
                             [f"v_max_u32 v{VD+14}, v{VD+4}, v{VD+8}", f"v_cmp_eq_u32 vcc, -1, v{VD+14}"], "q",
                             pre=[f"s_lshl_b32 {t0}, {sHKV}, 16", f"s_lshl_b32 {t1}, {sB}, 13", f"s_add_u32 {t0}, {t0}, {t1}",
                                  f"s_lshl_b32 {t1}, {sW}, 9", f"s_add_u32 {t0}, {t0}, {t1}",
                                  f"v_lshrrev_b32 v{VD+12}, 5, {vL}", f"v_lshlrev_b32 v{VD+12}, 11, v{VD+12}",
                                  f"v_and_b32 v{VD+13}, 31, {vL}", f"v_lshlrev_b32 v{VD+13}, 4, v{VD+13}",
                                  f"v_add3_u32 v{VD+12}, v{VD+12}, v{VD+13}, {t0}", f"v_add_u32 v{VD+13}, 0x1000, v{VD+12}"])

    def q_gather():
        q_verify()
        a = VD + 4
        for i in range(4):
            P(f"v_add_f32 v{a+i}, v{a+i}, v{a+4+i}")
        x0, x1 = v(T), v(T+1)
        P(f"v_and_b32 {x0}, 31, {vL}", f"v_lshrrev_b32 {x1}, 5, {vL}", f"v_lshlrev_b32 {x1}, 2, {x1}",
          f"v_lshl_add_u32 {x0}, {x0}, 3, {x1}", f"s_lshl_b32 {t0}, {sW}, 8", f"s_add_u32 {t0}, {t0}, {QL}", f"v_add_u32 {x0}, {t0}, {x0}",
          f"v_permlane32_swap_b32 v{a}, v{a+2}", f"v_permlane32_swap_b32 v{a+1}, v{a+3}",
          f"v_add_f32 v{a}, v{a}, v{a+2}", f"v_add_f32 v{a+1}, v{a+1}, v{a+3}", f"v_cvt_pk_bf16_f32 v{a}, v{a}, v{a+1}",
          f"ds_write_b32 {x0}, v{a}",
          f"v_bfe_u32 {x0}, {vL}, 2, 1", f"v_and_b32 {x1}, 48, {vL}", f"v_lshl_add_u32 {x1}, {x0}, 9, {x1}", f"v_add_u32 {x1}, {QL}, {x1}")
        P.lgk()
        P("s_barrier")
        for ks in range(8):
            P(f"ds_read_b128 {vr(VQ+4*ks,4)}, {x1} offset:{64*ks}")

    def k_read(Tn):
        def f():
            P.wait(sop[8*Tn + 7])
            for ks in range(8):
                P(f"ds_read_b128 {ar(32*Tn + 4*ks, 4)}, {vKR1 if Tn & 1 else vKR0} offset:{64*ks}")
        return f

    def qk(Tn):
        d = VD + 4 * (Tn & 3)
        for ks in range(8):
            P(f"v_mfma_f32_16x16x32_bf16 {vr(d,4)}, {ar(32*Tn + 4*ks, 4)}, {vr(VQ+4*ks,4)}, {'0' if ks == 0 else vr(d,4)}")

    def qk_sel(Tn):
        d = VD + 4 * (Tn & 3)
        for tt in range(2):
            P(f"v_cndmask_b32 v{VS+2*Tn+tt}, v{d+2*tt}, v{d+2*tt+1}, {mPAR}")
        for tt in range(2):
            rb(P, v(VS+2*Tn+tt), v(VS+2*Tn+tt))

    vm_, vl_ = T + 4, T + 5

    def lanered(op, r, x):
        P(f"{op}_dpp {r}, {r}, {r} row_ror:8 {FULL}", f"v_mov_b32 {x}, {r}", f"v_permlane16_swap_b32 {r}, {x}",
          f"{op} {r}, {r}, {x}", f"v_mov_b32 {x}, {r}", f"v_permlane32_swap_b32 {r}, {x}", f"{op} {r}, {r}, {x}")

    def softmax1a():
        m = v(vm_)
        P(f"v_max3_f32 {m}, v{VS}, v{VS+1}, v{VS+2}")
        for i in range(3, 15, 2):
            P(f"v_max3_f32 {m}, {m}, v{VS+i}, v{VS+i+1}")
        P(f"v_max_f32 {m}, {m}, v{VS+15}")
        lanered("v_max_f32", m, v(T))
        P(f"s_mov_b32 {t0}, {CSC}")
        for i in range(16):
            P(f"v_sub_f32 v{VS+i}, v{VS+i}, {m}")
        for i in range(16):
            P(f"v_mul_f32 v{VS+i}, {t0}, v{VS+i}")

    def softmax1b():
        l = v(vl_)
        for i in range(16):
            P(f"v_exp_f32 v{VS+i}, v{VS+i}")
        P(f"v_add_f32 {l}, v{VS}, v{VS+1}")
        for i in range(2, 16):
            P(f"v_add_f32 {l}, {l}, v{VS+i}")
        lanered("v_add_f32", l, v(T))
        P(f"s_lshl_b32 {t0}, {sB}, 3", f"s_add_u32 {t0}, {t0}, {sHKV}", f"s_lshl_b32 {t0}, {t0}, 8", f"s_add_u32 {t0}, {t0}, {MLBUF}",
          f"v_and_b32 v{T+6}, 31, {vL}", f"v_lshl_add_u32 v{T+6}, v{T+6}, 3, {t0}",
          f"s_lshl_b32 {t1}, {sS}, 2", f"s_add_u32 {t1}, {t1}, {sW}", f"s_lshl_b32 {t1}, {t1}, 3", f"s_add_u32 {t0}, {t0}, {t1}",
          f"v_lshl_add_u32 v{T}, {vL}, 5, {t0}", f"v_and_b32 v{T+1}, 59, {vL}", f"v_cmp_eq_u32 vcc, 0, v{T+1}",
          f"v_mov_b32 v{T+1}, {OOB}", f"v_cndmask_b32 v{T}, v{T+1}, v{T}, vcc")
        P.vm(f"buffer_store_dwordx2 {vr(vm_,2)}, v{T}, {srd(WS_)}, 0 offen sc1")

    ml_issue, ml_verify = poll(P, c, [f"buffer_load_dwordx2 {vr(VD,2)}, v{T+6}, {srd(WS_)}, 0 offen sc1"],
                               [f"v_cmp_eq_u32 vcc, -1, v{VD+1}"], "ml")

    def softmax2a():
        ml_verify()
        M, L = v(VD+2), v(VD+3)
        P(f"v_max_f32_dpp {M}, v{VD}, v{VD} row_ror:8 {FULL}")
        for r in (4, 2, 1):
            P(f"v_max_f32_dpp {M}, {M}, {M} row_ror:{r} {FULL}")
        P(f"s_mov_b32 {t0}, {CSC}", f"v_sub_f32 {L}, v{VD}, {M}", f"v_mul_f32 {L}, {t0}, {L}", f"v_exp_f32 {L}, {L}",
          f"v_mul_f32 {L}, {L}, v{VD+1}")
        for r in (8, 4, 2, 1):
            P(f"v_add_f32_dpp {L}, {L}, {L} row_ror:{r} {FULL}")
        P(f"v_readlane_b32 {t1}, {M}, 0", f"v_readlane_b32 {t2}, {M}, 16", f"v_readlane_b32 {t3}, {L}, 0", f"v_readlane_b32 {t4}, {L}, 16",
          f"v_mov_b32 {M}, {t1}", f"v_mov_b32 v{VD}, {t2}", f"v_mov_b32 {L}, {t3}", f"v_mov_b32 v{VD+1}, {t4}",
          f"v_cndmask_b32 {M}, {M}, v{VD}, {mH}", f"v_cndmask_b32 {L}, {L}, v{VD+1}, {mH}",
          f"v_sub_f32 {M}, v{vm_}, {M}", f"v_mul_f32 {M}, {t0}, {M}", f"v_exp_f32 {M}, {M}", f"v_rcp_f32 {L}, {L}",
          f"v_mul_f32 {M}, {M}, {L}")
        for i in range(16):
            P(f"v_mul_f32 v{VS+i}, v{VS+i}, {M}")

    def softmax2b():
        for i in range(16):
            P(f"v_cvt_pk_bf16_f32 v{VS+i}, v{VS+i}, v{VS+i}")
        for i in range(16):
            P(f"v_and_b32 v{VA+2*i}, v{VS+i}, {vM0}", f"v_and_b32 v{VA+2*i+1}, v{VS+i}, {vM1}")

    def pv(vi):
        p, t = vi >> 4, vi & 15
        d = VACC + 8 * (p & 1)
        r = 4 * (vi & 31)
        P.wait(sop[64 + vi])
        for hf in range(2):
            P(f"v_mfma_f32_16x16x16_bf16 {vr(d+4*hf,4)}, {vr(VA+2*t,2)}, {ar(r+2*hf,2)}, {'0' if t == 0 else vr(d+4*hf,4)}")

    def pv_merge(p):
        d = VACC + 8 * (p & 1)
        for i in range(4):
            P(f"v_permlane32_swap_b32 v{d+i}, v{d+4+i}")
        for i in range(4):
            P(f"v_add_f32_dpp v{d+i}, v{d+4+i}, v{d+i} row_ror:8 {FULL}")

    def opart_write(p):
        d = VACC + 8 * (p & 1)
        pv_merge(p)
        if p == 0:
            P(f"s_lshl_b32 {t0}, {sW}, 9", f"s_add_u32 {t0}, {t0}, {OPART}", f"v_add_u32 v{T+7}, {t0}, {vOL}")
        P(f"s_mov_b64 exec, {mN8}", f"ds_write_b128 v{T+7}, {vr(d,4)} offset:{2048*p}", "s_mov_b64 exec, -1")

    def opart_publish():
        x = v(T)
        P(f"s_lshl_b32 {t0}, {sW}, 11", f"s_add_u32 {t0}, {t0}, {OPART}", f"v_add_u32 {x}, {t0}, {vOL}")
        for w in range(4):
            P(f"ds_read_b128 {vr(VD+4*w,4)}, {x} offset:{512*w}")
        P(f"s_add_u32 {t0}, {sS}, {sW}", f"s_add_u32 {t0}, {t0}, 1", f"s_and_b32 {t0}, {t0}, 3", f"s_lshl_b32 {t0}, {t0}, 3",
          f"s_and_b32 {t1}, s2, 0xe7", f"s_or_b32 {t0}, {t0}, {t1}", f"s_mul_i32 {t0}, {t0}, 1536",
          f"s_lshl_b32 {t1}, {sW}, 9", f"s_add_u32 {t1}, {t1}, {OBUF}", f"s_cmp_eq_u32 {sW}, 3", f"s_cselect_b32 {t1}, {OOB}, {t1}",
          f"s_add_u32 {t0}, {t0}, {t1}", f"s_mul_i32 {t2}, s2, 1536", f"s_add_u32 {t1}, {t1}, {t2}",
          f"v_add_u32 v{T+1}, {t0}, {vOL}", f"v_mov_b32 v{T+2}, {OOB}", f"v_cndmask_b32 v{T+1}, v{T+2}, v{T+1}, {mN8}",
          f"v_add_u32 v{T+6}, {t1}, {vOL}")
        P.lgk()
        for i in range(4):
            P(f"v_add_f32 v{VD+i}, v{VD+i}, v{VD+4+i}", f"v_add_f32 v{VD+8+i}, v{VD+8+i}, v{VD+12+i}")
        for i in range(4):
            P(f"v_add_f32 v{VD+4+i}, v{VD+i}, v{VD+8+i}")
        P.vm(f"buffer_store_dwordx4 {vr(VD+4,4)}, v{T+1}, {srd(WS_)}, 0 offen sc1")

    of_issue, of_verify = poll(P, c, [f"buffer_load_dwordx4 {vr(VD,4)}, v{T+6}, {srd(WS_)}, 0 offen sc1"],
                               [f"v_cmp_eq_u32 vcc, -1, v{VD}"], "of")

    lin = {}

    def lin_load(r, key, base, i, goff):
        def f():
            P(f"s_add_u32 {t0}, {base}, {1024*i}", f"s_mov_b32 m0, {t0}", f"s_mov_b32 {t1}, {goff + 1024*i}")
            lin[key] = P.vm(f"buffer_load_dwordx4 {vLIN}, {srd(r)}, {t1} offen {c['wflag']} lds")
        return f

    def tr_rows(area, dst, lo, hi):
        x = vWOR
        if area:
            x = v(T+3)
            P(f"v_add_u32 {x}, {area}, {vWOR}")
        n = 0
        for t in range(7):
            for ks in range(2):
                for u in range(2):
                    if lo <= n < hi:
                        P(f"ds_read_b64_tr_b16 {ar(dst(ks, t) + 2*u, 2)}, {x} offset:{896*(8*ks + 4*u) + 32*t}")
                    n += 1

    wo_reg = lambda ks, t: 128 + 16 * t + 4 * ks
    w2_reg = lambda ks, t: 8 * t + 4 * ks

    if not svc:
        def w13_setup():
            P(f"s_lshl_b32 {t0}, {sJ}, 7", f"s_mul_i32 {t1}, {sW}, {112*3584}", f"s_add_u32 {t0}, {t0}, {t1}")
            mk_srd(P, WA_, pW1, t0, 111 * 3584 + 128)
            mk_srd(P, WB_, pW3, t0, 111 * 3584 + 128)
            x0, x1 = v(T), v(T+1)
            P(f"v_lshrrev_b32 {x0}, 3, {vL}", f"v_mul_u32_u24 {x0}, 3584, {x0}", f"v_and_b32 {x1}, 7, {vL}",
              f"v_lshl_add_u32 {vWG}, {x1}, 4, {x0}",
              f"v_bfe_u32 {x0}, {vL}, 4, 1", f"v_mul_u32_u24 {x0}, 2112, {x0}", f"v_bfe_u32 {x1}, {vL}, 3, 1",
              f"v_lshl_add_u32 {x0}, {x1}, 9, {x0}", f"v_lshrrev_b32 {x1}, 5, {vL}", f"v_lshl_add_u32 {x0}, {x1}, 8, {x0}",
              f"v_bfe_u32 {x1}, {vL}, 2, 1", f"v_lshl_add_u32 {x0}, {x1}, 7, {x0}", f"v_and_b32 {x1}, 3, {vL}",
              f"v_lshl_add_u32 {x0}, {x1}, 3, {x0}", f"v_add_u32 {vWR}, {sWST}, {x0}")

        w13_reg = lambda ks, m, t: VW + 32 * ks + 4 * (4 * m + t) if ks < 3 else VW + 96 + 2 * (4 * m + t)
        w13op = {}

        def w13_load(ch, q, u):
            ks, m = ch >> 1, ch & 1

            def f():
                P(f"s_add_u32 {t0}, {sWST}, {4224*(ch % 3) + 1056*(2*q + u)}", f"s_mov_b32 m0, {t0}",
                  f"s_mov_b32 {t1}, {(56*q + 16*ks + 8*u) * 3584}")
                w13op[ch] = P.vm(f"buffer_load_dwordx4 {vWG}, {srd(WB_ if m else WA_)}, {t1} offen {c['wflag']} lds")
            return f

        def w13_read(ch):
            ks, m = ch >> 1, ch & 1

            def f():
                P.wait(w13op[ch])
                for t in range(4):
                    for u in range(2 if ks < 3 else 1):
                        P(f"ds_read_b64_tr_b16 {vr(w13_reg(ks, m, t) + 2*u, 2)}, {vWR} offset:{4224*(ch % 3) + 1056*u + 32*t}")
            return f

        at(3, setup_blocks)
        at(D - 1, ws_srd)
        at(D - 1, wq_setup)
        at(D - 1, setup_common)
        at(D - 1, w13_setup)
        for i in range(4):
            at(D - 1 + 2 * i, wq_load(i))
        at(D - 1, prefetch_code)
        lo, hi = c["W13"]
        lst = [(ch, q, u) for ch in range(8) for q in range(2) for u in range(2 if ch < 6 else 1)]
        pos = [lo + (hi - lo) * i // len(lst) for i in range(len(lst))]
        rd = {}
        for (ch, q, u), n in zip(lst, pos):
            if ch >= 3:
                assert n > rd[ch - 3], (ch, n, rd)
            at(n, w13_load(ch, q, u))
            rd[ch] = done_slot(n + 1)
        for ch in range(8):
            ev.setdefault(rd[ch], []).insert(0, w13_read(ch))
            ev.setdefault(rd[ch] + 1, []).insert(0, P.lgk)
        w13_done = rd[7] + 1
        at(c["F0"], fl_issue)
        at(done_slot(c["F0"] + 1), fl_verify)
    else:
        CV, XV, SB = VQ, VQ + 8, VQ + 16
        PIV, XT = VS, VS + 2
        mop = {}

        def mod_setup():
            P(f"s_mul_i32 {t2}, {sG}, 37", f"s_lshr_b32 {t2}, {t2}, 8",
              f"s_mul_i32 {t3}, {t2}, 7", f"s_sub_u32 {t3}, {sG}, {t3}",
              f"s_mul_i32 {t0}, {t2}, 1792", f"s_lshl_b32 {t1}, {t3}, 7", f"s_add_u32 {t0}, {t0}, {t1}",
              f"s_mul_i32 {t1}, {sW}, {112*5376}", f"s_add_u32 {t0}, {t0}, {t1}",
              f"s_cmp_lt_u32 {sG}, 21", f"s_cselect_b32 {t4}, {111*5376 + 1024}, 0", f"s_cselect_b32 {t0}, {t0}, 0")
            mk_srd(P, WA_, pWM, t0, t4)
            x0, x1 = v(T+4), v(T+5)
            P(f"v_lshrrev_b32 {x0}, 3, {vL}", f"v_mul_u32_u24 {x0}, 5376, {x0}", f"v_and_b32 {x1}, 7, {vL}",
              f"v_lshl_add_u32 {vWG}, {x1}, 4, {x0}",
              f"v_mul_u32_u24 {x0}, 896, {x1}", f"v_mov_b32 v{PIV+1}, {x0}", f"v_lshrrev_b32 {x1}, 4, {vL}", f"v_lshl_add_u32 {x0}, {x1}, 3, {x0}",
              f"s_lshl_b32 {t0}, {t3}, 7", f"s_lshl_b32 {t1}, {sW}, 5", f"s_add_u32 {t0}, {t0}, {t1}", f"v_add_u32 v{XT}, {t0}, {x0}",
              f"s_mul_i32 {t0}, {sW}, 224", f"v_add_u32 {x0}, {t0}, {x0}", f"v_and_b32 {x1}, 8, {vL}", f"v_lshl_add_u32 {x1}, {x1}, 2, {x0}")
            for i in range(4):
                P.vm(f"global_load_dwordx2 {vr(CV+2*i,2)}, {x0 if i == 3 else x1}, {sp(pC)} offset:{64*i}")
            for i in range(4):
                P.vm(f"global_load_dwordx2 {vr(XV+2*i,2)}, {x0 if i == 3 else x1}, {sp(pX)} offset:{64*i}")
            P.vm(f"global_load_ushort v{PIV}, v{PIV+1}, {sp(pX)}")
            mop["in"] = P.vm(f"global_load_dwordx2 {vr(XT,2)}, v{XT}, {sp(pX)}")

        def silu_c(i):
            def f():
                P.wait(mop["in"])
                x = [v(T+k) for k in range(4)]
                y = [v(T+4+k) for k in range(4)]
                P(f"v_lshlrev_b32 {x[0]}, 16, v{CV+2*i}", f"v_and_b32 {x[1]}, 0xffff0000, v{CV+2*i}",
                  f"v_lshlrev_b32 {x[2]}, 16, v{CV+2*i+1}", f"v_and_b32 {x[3]}, 0xffff0000, v{CV+2*i+1}")
                for k in range(4):
                    P(f"v_mul_f32 {y[k]}, {LOG2E | 0x80000000:#x}, {x[k]}")
                for k in range(4):
                    P(f"v_exp_f32 {y[k]}, {y[k]}")
                for k in range(4):
                    P(f"v_add_f32 {y[k]}, 1.0, {y[k]}")
                for k in range(4):
                    P(f"v_rcp_f32 {y[k]}, {y[k]}")
                for k in range(4):
                    P(f"v_mul_f32 {x[k]}, {x[k]}, {y[k]}")
                P(f"v_cvt_pk_bf16_f32 v{SB+4*i}, {x[0]}, {x[1]}", f"v_cvt_pk_bf16_f32 v{SB+4*i+1}, {x[2]}, {x[3]}")
                if i < 3:
                    P(f"v_mov_b32_dpp v{SB+4*i+2}, v{SB+4*i} row_ror:8 {FULL}", f"v_mov_b32_dpp v{SB+4*i+3}, v{SB+4*i+1} row_ror:8 {FULL}")
            return f

        S1, S2 = VS + 4, VS + 5

        def stats(i):
            def f():
                x = [v(T+k) for k in range(4)]
                if i == 0:
                    P(f"v_lshlrev_b32 v{PIV}, 16, v{PIV}", f"v_mov_b32 v{S1}, 0", f"v_mov_b32 v{S2}, 0")
                if i == 3:
                    P(f"s_mov_b64 exec, {mN8}")
                P(f"v_lshlrev_b32 {x[0]}, 16, v{XV+2*i}", f"v_and_b32 {x[1]}, 0xffff0000, v{XV+2*i}",
                  f"v_lshlrev_b32 {x[2]}, 16, v{XV+2*i+1}", f"v_and_b32 {x[3]}, 0xffff0000, v{XV+2*i+1}")
                for k in range(4):
                    P(f"v_sub_f32 {x[k]}, {x[k]}, v{PIV}")
                for k in range(4):
                    P(f"v_add_f32 v{S1}, v{S1}, {x[k]}", f"v_fmac_f32 v{S2}, {x[k]}, {x[k]}")
                if i == 3:
                    P("s_mov_b64 exec, -1")
                    lanered("v_add_f32", v(S1), v(T))
                    lanered("v_add_f32", v(S2), v(T))
                    P(f"s_lshl_b32 {t0}, {sW}, 6", f"s_add_u32 {t0}, {t0}, {STAT}", f"v_and_b32 v{T}, 7, {vL}",
                      f"v_lshl_add_u32 v{T}, v{T}, 3, {t0}", f"ds_write_b64 v{T}, {vr(S1,2)}")
            return f

        mreg = lambda m, t: VW + 14 * (4 * m + t)

        def mod_read(m):
            def f():
                P.wait(sop[-28 + 14 * m + 13])
                if m == 0:
                    P(f"v_lshrrev_b32 v{T}, 2, {vL}", f"v_and_b32 v{T+1}, 3, {vL}", f"v_lshlrev_b32 v{T+1}, 3, v{T+1}",
                      f"v_lshl_add_u32 v{T}, v{T}, 7, v{T+1}", f"v_add_u32 {vWR}, {sSL1}, v{T}")
                else:
                    P(f"v_add_u32 {vWR}, {AREA_B}, {vWR}")
                for t in range(4):
                    for i in range(7):
                        P(f"ds_read_b64_tr_b16 {vr(mreg(m, t) + 2*i, 2)}, {vWR} offset:{2048*i + 32*t}")
            return f

        def mod_mfma(m):
            def f():
                P.lgk()
                for ks in range(4):
                    for t in range(4):
                        d = VA + 4 * (4 * m + t)
                        if ks < 3:
                            P(f"v_mfma_f32_16x16x32_bf16 {vr(d,4)}, {vr(mreg(m,t)+4*ks,4)}, {vr(SB+4*ks,4)}, {'0' if ks == 0 else vr(d,4)}")
                        else:
                            P(f"v_mfma_f32_16x16x16_bf16 {vr(d,4)}, {vr(mreg(m,t)+12,2)}, {vr(SB+12,2)}, {vr(d,4)}")
            return f

        def mod_final():
            x0, x1, x2 = v(T), v(T+1), v(T+2)
            P(f"v_lshrrev_b32 {x0}, 4, {vL}", f"v_and_b32 {x1}, 7, {vL}", f"v_lshlrev_b32 {x1}, 4, {x1}",
              f"v_lshl_add_u32 {x0}, {x0}, 7, {x1}", f"v_add_u32 {x1}, {sWST}, {x0}", f"s_mov_b64 exec, {mN8}")
            for mt in range(8):
                P(f"ds_write_b128 {x1}, {vr(VA+4*mt,4)} offset:{512*mt}")
            P("s_mov_b64 exec, -1", f"v_and_b32 {x2}, 8, {vL}", f"v_lshl_add_u32 {x0}, {x2}, 8, {x0}",
              f"s_lshl_b32 {t0}, {sW}, 9", f"s_add_u32 {t0}, {t0}, {AREA_B}", f"v_add_u32 {x0}, {t0}, {x0}",
              f"v_and_b32 {x2}, 7, {vL}", f"v_lshlrev_b32 {x2}, 3, {x2}", f"v_add_u32 {x2}, {STAT}, {x2}")
            P.lgk()
            P("s_barrier")
            for w in range(4):
                P(f"ds_read_b128 {vr(VA+4*w,4)}, {x0} offset:{REG_W*w}", f"ds_read_b64 {vr(VA+16+2*w,2)}, {x2} offset:{64*w}")
            P(f"s_mul_i32 {t2}, {sG}, 37", f"s_lshr_b32 {t2}, {t2}, 8", f"s_mul_i32 {t3}, {t2}, 7", f"s_sub_u32 {t3}, {sG}, {t3}",
              f"s_mul_i32 {t0}, {t2}, {16*896}", f"s_lshl_b32 {t1}, {t3}, 7", f"s_add_u32 {t0}, {t0}, {t1}",
              f"s_lshl_b32 {t1}, {sW}, 5", f"s_add_u32 {t0}, {t0}, {t1}", f"s_add_u32 {t0}, {t0}, {MODBUF - 16*896}",
              f"s_cmp_lt_u32 {sG}, 21", f"s_cselect_b32 {t0}, {t0}, {OOB}",
              f"v_and_b32 {x1}, 15, {vL}", f"v_mul_u32_u24 {x1}, 896, {x1}", f"v_lshrrev_b32 v{T+3}, 4, {vL}",
              f"v_lshl_add_u32 {x1}, v{T+3}, 3, {x1}", f"v_add_u32 {x1}, {t0}, {x1}")
            P.lgk()
            m = VA
            for i in range(4):
                P(f"v_add_f32 v{m+i}, v{m+i}, v{m+4+i}", f"v_add_f32 v{m+8+i}, v{m+8+i}, v{m+12+i}")
            for i in range(4):
                P(f"v_add_f32 v{m+i}, v{m+i}, v{m+8+i}")
            skip = P.label("noh")
            P(f"s_cmp_lt_u32 {sG}, 7", f"s_cbranch_scc0 {skip}")
            s = VA + 16
            mean, var, rs = v(s+2), v(s+3), v(s+4)
            P(f"v_add_f32 v{s}, v{s}, v{s+2}", f"v_add_f32 v{s+1}, v{s+1}, v{s+3}", f"v_add_f32 v{s+4}, v{s+4}, v{s+6}",
              f"v_add_f32 v{s+5}, v{s+5}, v{s+7}", f"v_add_f32 v{s}, v{s}, v{s+4}", f"v_add_f32 v{s+1}, v{s+1}, v{s+5}",
              f"v_mul_f32 v{s}, {RN:#x}, v{s}", f"v_mul_f32 v{s+1}, {RN:#x}, v{s+1}",
              f"v_add_f32 {mean}, v{PIV}, v{s}", f"v_fma_f32 {var}, -v{s}, v{s}, v{s+1}", f"v_max_f32 {var}, 0, {var}")
            rb(P, mean, mean); rb(P, var, var)
            P(f"v_add_f32 {var}, {EPS:#x}, {var}"); rb(P, var, var)
            P(f"v_sqrt_f32 {var}, {var}"); rb(P, var, var)
            P(f"v_rcp_f32 {rs}, {var}")
            y = [v(m+4+k) for k in range(4)]
            z = [v(m+8+k) for k in range(4)]
            e = [v(m+12+k) for k in range(4)]
            P(f"v_lshlrev_b32 {y[0]}, 16, v{XT}", f"v_and_b32 {y[1]}, 0xffff0000, v{XT}",
              f"v_lshlrev_b32 {y[2]}, 16, v{XT+1}", f"v_and_b32 {y[3]}, 0xffff0000, v{XT+1}")
            for k in range(4):
                P(f"v_sub_f32 {y[k]}, {y[k]}, {mean}"); rb(P, y[k], y[k])
                P(f"v_mul_f32 {z[k]}, {y[k]}, {rs}", f"v_fma_f32 {e[k]}, -{z[k]}, {var}, {y[k]}", f"v_fma_f32 {y[k]}, {e[k]}, {rs}, {z[k]}")
                rb(P, y[k], y[k])
                rb(P, v(m+k), v(m+k))
                P(f"v_add_f32 {z[k]}, 1.0, v{m+k}"); rb(P, z[k], z[k])
                P(f"v_mul_f32 {z[k]}, {y[k]}, {z[k]}"); rb(P, z[k], z[k])
            for k in range(4):
                P(f"v_add_f32_dpp v{m+k}, v{m+k}, {z[k]} row_ror:8 {FULL}")
            P(f"s_lshl_b32 {t0}, {sG}, 10", f"s_lshl_b32 {t1}, {sW}, 8", f"s_add_u32 {t0}, {t0}, {t1}", f"s_add_u32 {t0}, {t0}, {HBUF}",
              f"v_lshrrev_b32 {x0}, 4, {vL}", f"v_and_b32 {x1}, 7, {vL}", f"v_lshlrev_b32 {x1}, 3, {x1}", f"v_lshl_add_u32 {x0}, {x0}, 6, {x1}",
              f"v_add_u32 {x0}, {t0}, {x0}", f"v_mov_b32 {x1}, {OOB}", f"v_cndmask_b32 {x1}, {x1}, {x0}, {mPAR}",
              f"{skip}:",
              f"v_cvt_pk_bf16_f32 v{m}, v{m}, v{m+1}", f"v_cvt_pk_bf16_f32 v{m+1}, v{m+2}, v{m+3}",
              f"v_min_u32 v{m}, -2, v{m}", f"v_min_u32 v{m+1}, -2, v{m+1}")
            fl_verify()
            P.vm(f"buffer_store_dwordx2 {vr(m,2)}, {x1}, {srd(WS_)}, 0 offen sc1")

        P(f"s_lshl_b32 {sG}, {sB}, 2", f"s_add_u32 {sG}, {sG}, {sJ}", f"s_sub_u32 {sG}, {sG}, 28")
        ws_srd()
        clears1()
        mod_setup()
        at(-28 + c["DI"] - 1, setup_common)
        at(-28 + c["DI"] - 1, setup_blocks)
        n0 = -28 + c["DI"]
        for i in range(4):
            at(n0 + i, silu_c(i))
            at(n0 + 4 + i, stats(i))
        at(n0 + 8, wq_setup)
        at(n0 + 9, prefetch_code)
        ra, rb_ = done_slot(-15), done_slot(-1)
        at(ra, mod_read(0))
        at(ra + 1, mod_mfma(0))
        for i in range(4):
            at(12 + 2 * i, wq_load(i))
        at(0, fl_issue)
        for i in range(10):
            at(19 + 2 * i, clear2(i))
        at(rb_, mod_read(1))
        at(rb_, mod_mfma(1))
        at(rb_ + 1, mod_final)
        w13_done = rb_ + 1

    at(30, setup_tail)
    at(c["H0"], h_issue)
    at(done_slot(c["H0"] + 1), q_unit)
    at(c["Q0"], q_issue)
    nq = done_slot(c["Q0"] + 1)
    assert nq >= w13_done
    at(nq, q_gather)
    kr = {}
    for Tn in range(8):
        kr[Tn] = done_slot(8 * Tn + 7)
        assert kr[Tn] < 8 * Tn + 16
        ev.setdefault(kr[Tn], []).insert(0, k_read(Tn))
        at(kr[Tn], P.lgk)
    n, used = nq + 1, 0
    qks = {}
    for Tn in range(8):
        if n <= kr[Tn]:
            n, used = kr[Tn] + (0 if Tn == 7 else 1), 0
        at(n, P.lgk)
        at(n, (lambda Tn: lambda: qk(Tn))(Tn))
        qks[Tn] = n
        if Tn < 4:
            assert n < 64 + 8 * Tn
        used += 1
        if used == 2:
            n, used = n + 1, 0
    for Tn in range(8):
        ev.setdefault(qks[Tn] + 1, []).insert(0, (lambda Tn: lambda: qk_sel(Tn))(Tn))
    n = qks[7] + 1
    at(n, softmax1a)
    at(n + 1, softmax1b)
    assert c["M0"] > n + 1
    at(c["M0"], ml_issue)
    nm = done_slot(c["M0"] + 1)
    at(nm, softmax2a)
    at(nm + 1, softmax2b)
    pv0 = nm + 2
    vi, n = 0, pv0
    pend = {}
    while n < 128:
        k = 0
        while k < 6 and vi < 64 and done_slot(64 + vi) <= n:
            assert n < 64 + 32 + vi, "V ring overrun"
            at(n, (lambda vi: lambda: pv(vi))(vi))
            if vi & 15 == 15:
                pend[vi >> 4] = n
            vi += 1
            k += 1
        n += 1
    for p in range(3):
        ev.setdefault(pend[p] + 1, []).insert(0, (lambda p: lambda: opart_write(p))(p))
    X3 = pend[2] + 1
    X1 = c["X1"]
    a0, a1 = nq + 1, X1 - DV - 1
    for i in range(14):
        at(a0 + (a1 - a0) * i // 14, lin_load(WO_, "wo0", sWST, i, 0))

    def bar_x1():
        P.wait(lin["wo0"])
        P("s_barrier")
        tr_rows(AREA_B, wo_reg, 0, 14)
    at(X1, bar_x1)
    at(X1 + 1, lambda: tr_rows(AREA_B, wo_reg, 14, 28))
    a0, a1 = X1, X3 - DV - 1
    for i in range(14):
        at(a0 + (a1 - a0) * i // 14, lin_load(WO_, "wo1", sSL1, i, 256 * 896))

    def bar_x3():
        P.wait(lin["wo1"])
        P.lgk()
        P("s_barrier")
        opart_publish()
    at(X3, bar_x3)
    at(X3 + 1, lambda: tr_rows(AREA_A, lambda ks, t: wo_reg(ks + 2, t), 0, 14))
    at(X3 + 2, lambda: tr_rows(AREA_A, lambda ks, t: wo_reg(ks + 2, t), 14, 28))

    if not svc:
        cpre = [f"v_and_b32 v{T}, 15, {vL}", f"v_cmp_gt_u32 {mT}, 14, v{T}", f"v_min_u32 v{T}, 13, v{T}",
                f"v_bfe_u32 v{T+1}, {vL}, 4, 1", f"v_mad_u32_u24 v{T}, v{T+1}, 14, v{T}",
                f"v_lshrrev_b32 v{T+1}, 5, {vL}",
                f"s_lshl_b32 {t0}, {sB}, 2", f"s_add_u32 {t0}, {t0}, {sW}", f"s_mul_i32 {t1}, {t0}, 14336", f"s_add_u32 {t1}, {t1}, {PBUF}",
                f"v_mul_u32_u24 v{T+2}, 448, v{T+1}", f"v_lshl_add_u32 v{T+2}, v{T}, 4, v{T+2}", f"v_add_u32 v{T+2}, {t1}, v{T+2}",
                f"v_mov_b32 {vGA}, {OOB}", f"v_cndmask_b32 {vGA}, {vGA}, v{T+2}, {mT}",
                f"v_lshlrev_b32 v{T+1}, 2, v{T+1}", f"v_lshl_add_u32 v{T}, v{T}, 3, v{T+1}",
                f"s_mul_i32 {t0}, {t0}, 224", f"v_add_u32 v{VS}, {t0}, v{T}", f"v_add_u32 v{VS+1}, {MODBUF}, v{VS}",
                f"v_add_u32 v{VS+2}, {8*896}, v{VS+1}", f"v_add_u32 v{VS+3}, {16*896}, v{VS+1}"]
        c_issue, c_verify = poll(P, c, [f"global_load_dword v{cX+1}, v{VS}, {sp(pX)}",
                                        f"buffer_load_dword v{cGA+1}, v{VS+1}, {srd(WS_)}, 0 offen sc1",
                                        f"buffer_load_dword v{cSB+1}, v{VS+2}, {srd(WS_)}, 0 offen sc1",
                                        f"buffer_load_dword v{cCB+1}, v{VS+3}, {srd(WS_)}, 0 offen sc1"],
                                 [f"v_max3_u32 v{cGA}, v{cGA+1}, v{cSB+1}, v{cCB+1}", f"v_cmp_eq_u32 vcc, -1, v{cGA}"], "mod", pre=cpre)

        def consts():
            c_verify()
            for r in (cGA, cX, cCB, cSB):
                P(f"v_lshlrev_b32 v{r}, 16, v{r+1}", f"v_and_b32 v{r+1}, 0xffff0000, v{r+1}")
            for k in range(2):
                P(f"v_add_f32 v{cCB+k}, 1.0, v{cCB+k}")
                rb(P, v(cCB+k), v(cCB+k))
            P(f"s_mul_i32 {t0}, {sJ}, {64*896}", f"s_add_u32 {t0}, {t0}, {sSL1}")
            mk_srd(P, W2_, pW2, t0, REG_W)
    else:
        cpre = [f"v_and_b32 v{T}, 7, {vL}", f"v_cmp_gt_u32 {mT}, 7, v{T}", f"v_min_u32 v{T}, 6, v{T}",
                f"s_lshl_b32 {t0}, {sB}, 2", f"s_add_u32 {t0}, {t0}, {sJ}", f"s_sub_u32 {t0}, {t0}, 28",
                f"s_mul_i32 {t1}, {t0}, 14336", f"s_mul_i32 {t2}, {sW}, 112", f"s_add_u32 {t1}, {t1}, {t2}",
                f"v_lshrrev_b32 v{T+1}, 3, {vL}", f"v_mul_u32_u24 v{T+2}, 448, v{T+1}", f"v_lshl_add_u32 v{T+2}, v{T}, 4, v{T+2}",
                f"v_add_u32 v{T+2}, {t1}, v{T+2}", f"v_mov_b32 v{T+1}, {OOB}", f"v_cndmask_b32 {vGA}, v{T+1}, v{T+2}, {mT}",
                f"v_cmp_gt_u32 vcc, 32, {vL}", f"v_cndmask_b32 {vWG}, v{T+1}, {vGA}, vcc",
                f"v_lshrrev_b32 v{T+1}, 5, {vL}", f"v_lshlrev_b32 v{T+1}, 2, v{T+1}", f"v_lshl_add_u32 v{T}, v{T}, 3, v{T+1}",
                f"s_mul_i32 {t0}, {t0}, 224", f"s_mul_i32 {t2}, {sW}, 56", f"s_add_u32 {t0}, {t0}, {t2}",
                f"v_add_u32 v{VS}, {t0}, v{T}", f"v_add_u32 v{VS+1}, {MODBUF}, v{VS}", f"v_add_u32 v{VS+2}, {24*896}, v{VS+1}"]
        c_issue, c_verify = poll(P, c, [f"global_load_dword v{cX+1}, v{VS}, {sp(pX)}",
                                        f"buffer_load_dword v{cGA+1}, v{VS+1}, {srd(WS_)}, 0 offen sc1",
                                        f"buffer_load_dword v{cCB+1}, v{VS+2}, {srd(WS_)}, 0 offen sc1"],
                                 [f"v_max_u32 v{cGA}, v{cGA+1}, v{cCB+1}", f"v_cmp_eq_u32 vcc, -1, v{cGA}"], "mod", pre=cpre)

        def consts():
            c_verify()
            P(f"v_and_b32 v{T}, 16, {vL}")
            for r in (cGA, cX, cCB):
                P(f"v_lshrrev_b32 v{r}, v{T}, v{r+1}", f"v_lshlrev_b32 v{r}, 16, v{r}")
            P(f"v_lshrrev_b32 v{T}, 3, v{T}", f"v_add_u32 v{cSB}, v{VS}, v{T}")
    assert c["C0"] > nm + 1
    at(c["C0"], f2_issue)
    at(c["C0"], c_issue)
    at(done_slot(c["C0"] + 1), f2_verify)
    at(done_slot(c["C0"] + 1), consts)
    if not svc:
        a0, a1 = X3 + 1, 128
        for i in range(14):
            at(a0 + (a1 - a0) * i // 14, lin_load(W2_, "w2", sWST, i, 0))
    at(127, of_issue)

    for n in range(first, 128):
        if n - depth(n) >= first:
            P.wait(sop[n - depth(n)])
        if n < 0:
            m, i = (n + 28) // 14, (n + 28) % 14
            P(f"s_add_u32 {t0}, {sWST if m else sSL1}, {1024*i}", f"s_mov_b32 m0, {t0}", f"s_mov_b32 {t1}, {8*i*5376 + 896*m}")
            sop[n] = P.vm(f"buffer_load_dwordx4 {vWG}, {srd(WA_)}, {t1} offen {c['wflag']} lds")
        elif n < 64:
            Tn, j = n >> 3, n & 7
            off = 1056 * j - 1024 * (j & 3)
            base = sSL1 if Tn & 1 else sSL0
            if off:
                P(f"s_add_u32 m0, {base}, {off}")
            else:
                P(f"s_mov_b32 m0, {base}")
            sop[n] = P.vm(f"buffer_load_dwordx4 {vKG}, {srd(K_)}, s{BLK + (n >> 2)} offen offset:{1024*(j & 3)} {c['kflag']} lds")
        else:
            vi_ = n - 64
            if vi_ & 15 == 0:
                P(f"s_add_u32 {t0}, {sS}, {(vi_ >> 4) + 1}", f"s_and_b32 {t0}, {t0}, 3", f"s_lshl_b32 {t0}, {t0}, 7",
                  f"v_add_u32 {vV}, {t0}, {vVB}")
            sop[n] = P.vm(f"buffer_load_dwordx4 {ar(4*(vi_ & 31), 4)}, {vV}, {srd(V_)}, s{BLK + (vi_ & 15)} offen {c['kflag']}")
        for f in ev.pop(n, []):
            f()
        if n == 100:
            stamp(1)
        if c["stamps"] and n in c["mid"]:
            r = MIDS[c["mid"].index(n)]
            P(f"s_memrealtime s[{r}:{r+1}]")
    assert not ev, ev.keys()

    P(f"s_lshl_b32 {t0}, {sHKV}, 2", f"s_add_u32 {t0}, {t0}, {sS}", f"s_mul_i32 {t0}, {t0}, 448", f"s_add_u32 s{BLK+8}, {t0}, {PBUF}",
      f"s_mul_i32 {t0}, {sJ}, 448", f"s_add_u32 s{BLK+9}, {t0}, {FBUF}",
      f"s_lshl_b32 {t0}, {sW}, 9", f"s_add_u32 {t0}, {t0}, {ORED}", f"v_add_u32 v{T+7}, {t0}, {vOL}")
    if not svc:
        for i in range(8):
            P(f"s_add_u32 {t0}, {sHKV}, {i+1}", f"s_and_b32 {t0}, {t0}, 7", f"s_mul_i32 s{BLK+i}, {t0}, 1792")
    while vi < 64:
        pv(vi)
        vi += 1
    stamp(2)
    of_verify()
    P.waitall()
    d = VACC + 8
    pv_merge(3)
    for i in range(4):
        P(f"v_add_f32 v{d+i}, v{d+i}, v{VD+i}")
    P(f"s_mov_b64 exec, {mN8}", f"ds_write_b128 v{T+7}, {vr(d,4)}", "s_mov_b64 exec, -1")
    P.lgk()
    P("s_barrier")
    P(f"ds_read2st64_b64 {vr(VD,4)}, {vOR} offset0:0 offset1:1", f"ds_read2st64_b64 {vr(VD+4,4)}, {vOR} offset0:2 offset1:3")
    P.lgk(1)
    P(f"v_add_f32 v{VD}, v{VD}, v{VD+2}", f"v_add_f32 v{VD+1}, v{VD+1}, v{VD+3}")
    P.lgk(0)
    P(f"v_add_f32 v{VD+4}, v{VD+4}, v{VD+6}", f"v_add_f32 v{VD+5}, v{VD+5}, v{VD+7}",
      f"v_add_f32 v{VD}, v{VD}, v{VD+4}", f"v_add_f32 v{VD+1}, v{VD+1}, v{VD+5}", f"v_cvt_pk_bf16_f32 v{VD}, v{VD}, v{VD+1}")
    OB, OD = VA, VA + 16

    def bc(dst, src, n):
        P(f"v_mov_b32_dpp v{dst}, v{src} row_newbcast:{n} {FULL}")

    def gemv_out(nks, breg, areg, dreg, soff, bsrc):
        mm = lambda t, ks: P(f"v_mfma_f32_16x16x32_bf16 {vr(dreg+4*t,4)}, {ar(areg(ks,t),4)}, {vr(breg+4*ks,4)}, {'0' if ks == 0 else vr(dreg+4*t,4)}")
        st = lambda t: P.vm(f"buffer_store_dwordx4 {vr(dreg+4*t,4)}, {vST}, {srd(WS_)}, {soff} offen offset:{64*t} sc1")
        for k in range(4):
            bsrc(k)
        for ks in range(nks):
            if ks + 1 < nks:
                bsrc(4 * ks + 4); bsrc(4 * ks + 5)
            mm(0, ks)
            if ks + 1 < nks:
                bsrc(4 * ks + 6); bsrc(4 * ks + 7)
            mm(1, ks)
        lag = 8 // nks
        nst = 0
        for t in range(2, 7):
            for ks in range(nks):
                mm(t, ks)
            while nst <= t - lag:
                st(nst); nst += 1
        while nst < 7:
            st(nst); nst += 1

    gemv_out(4, OB, wo_reg, OD, f"s{BLK+8}", lambda k: bc(OB + k, VD, k))
    stamp(3)

    if not svc:
        G = VQ
        ld = lambda i: f"buffer_load_dwordx4 {vr(G+4*i,4)}, {vGA}, {srd(WS_)}, s{BLK + (i >> 1)} offen offset:{896*(i & 1)} sc1"
        for i in range(16):
            P.vm(ld(i))
        tr_rows(AREA_B, w2_reg, 0, 28)
        P(f"v_mov_b32 v{T+4}, 0", f"v_mov_b32 v{T+5}, 0", f"s_lshl_b32 {t0}, {sW}, 4", f"s_add_u32 {t0}, {t0}, {STAT}",
          f"v_mov_b32 v{T+7}, {t0}", f"v_and_b32 v{T+3}, 3, {vL}", f"v_lshlrev_b32 v{T+3}, 4, v{T+3}", f"v_add_u32 {vKR0}, {STAT}, v{T+3}",
          f"s_lshl_b32 {t0}, {sW}, 9", f"s_add_u32 {t0}, {t0}, {GU}", f"v_lshl_add_u32 {vKR1}, {vL}, 3, {t0}",
          f"v_lshlrev_b32 {vKG}, 3, {vL}", f"v_add_u32 {vKG}, {GU}, {vKG}",
          f"s_mov_b32 s{BLK+10}, 0x42e00000", f"s_mov_b32 s{BLK+12}, 0", f"s_mov_b32 s{BLK+13}, 0x80000000")
        top, out = P.label("g_top"), P.label("g_out")
        P(f"{top}:", "s_waitcnt vmcnt(0)")
        P.done = P.nvm - 1
        for g in range(4):
            P(f"v_max3_u32 v{T+g}, v{G+16*g}, v{G+16*g+4}, v{G+16*g+8}")
        for g in range(4):
            P(f"v_max_u32 v{T+g}, v{T+g}, v{G+16*g+12}")
        P(f"v_max3_u32 v{T+6}, v{T}, v{T+1}, v{T+2}", f"v_max_u32 v{T+6}, v{T+6}, v{T+3}", f"v_cmp_eq_u32 vcc, -1, v{T+6}")
        slow = P.label("g_slow")
        P(f"s_cbranch_vccnz {slow}", f"{out}:")
        P.cold += [f"{slow}:", f"s_add_u32 {sSPIN}, {sSPIN}, 1", f"s_cmp_gt_u32 {sSPIN}, {c['spin']}", f"s_cbranch_scc1 {out}"]
        for g in range(4):
            sk = P.label("g_skip")
            P.cold += [f"v_cmp_eq_u32 vcc, -1, v{T+g}", f"s_cbranch_vccz {sk}"] + [ld(4*g + i) for i in range(4)] + [f"{sk}:"]
        P.cold += [f"s_branch {top}"]
        stamp(4)
        for step in (8, 4, 2, 1):
            for i in range(step):
                for k in (0, 2):
                    P(f"v_pk_add_f32 {vr(G+4*i+k,2)}, {vr(G+4*i+k,2)}, {vr(G+4*(i+step)+k,2)}")
        a, b = v(G), v(G+1)
        P(f"v_permlane32_swap_b32 v{G}, v{G+2}", f"v_permlane32_swap_b32 v{G+1}, v{G+3}",
          f"v_add_f32 {a}, {a}, v{G+2}", f"v_add_f32 {b}, {b}, v{G+3}")
        rb(P, a, a); rb(P, b, b)
        P(f"v_mul_f32 {a}, {a}, v{cGA}", f"v_mul_f32 {b}, {b}, v{cGA+1}")
        rb(P, a, a); rb(P, b, b)
        P(f"v_add_f32 {a}, {a}, v{cX}", f"v_add_f32 {b}, {b}, v{cX+1}")
        rb(P, a, a); rb(P, b, b)
        s1, s2, pv_ = v(T+4), v(T+5), v(T+6)
        d0, d1 = v(G+2), v(G+3)
        P(f"v_readfirstlane_b32 {t0}, {a}", f"s_mov_b64 exec, {mT}",
          f"v_subrev_f32 {d0}, {t0}, {a}", f"v_subrev_f32 {d1}, {t0}, {b}", f"v_add_f32 {s1}, {d0}, {d1}",
          f"v_mul_f32 {s2}, {d0}, {d0}", f"v_fmac_f32 {s2}, {d1}, {d1}", "s_mov_b64 exec, -1", f"v_mov_b32 {pv_}, {t0}")
        for ctl in ("row_ror:8 " + FULL, "row_ror:4 " + FULL, "row_ror:2 " + FULL, "row_ror:1 " + FULL,
                    "row_bcast:15 row_mask:0xa bank_mask:0xf", "row_bcast:31 row_mask:0xc bank_mask:0xf"):
            P(f"v_add_f32_dpp {s1}, {s1}, {s1} {ctl}", f"v_add_f32_dpp {s2}, {s2}, {s2} {ctl}")
        P(f"s_mov_b64 exec, s[{BLK+12}:{BLK+13}]", f"ds_write_b96 v{T+7}, {vr(T+4,3)}", "s_mov_b64 exec, -1")
        P.lgk()
        P("s_barrier")
        P(f"ds_read_b96 {vr(T+4,3)}, {vKR0}")
        P.lgk()
        mean, var, dl, rs = v(T), v(T+1), v(T+2), v(T+3)
        n112 = f"s{BLK+10}"
        P(f"v_fma_f32 {mean}, {pv_}, {n112}, {s1}",
          f"v_add_f32_dpp {mean}, {mean}, {mean} quad_perm:[1,0,3,2] {FULL}", f"v_add_f32_dpp {mean}, {mean}, {mean} quad_perm:[2,3,0,1] {FULL}",
          f"v_mul_f32 {mean}, {RN:#x}, {mean}", f"v_add_f32 {s1}, {s1}, {s1}", f"v_sub_f32 {dl}, {mean}, {pv_}",
          f"v_fma_f32 {var}, {dl}, {n112}, -{s1}", f"v_fma_f32 {var}, {var}, {dl}, {s2}")
        rb(P, mean, mean)
        P(f"v_sub_f32 {d0}, {a}, {mean}",
          f"v_add_f32_dpp {var}, {var}, {var} quad_perm:[1,0,3,2] {FULL}",
          f"v_sub_f32 {d1}, {b}, {mean}")
        rb(P, d0, d0)
        P(f"v_add_f32_dpp {var}, {var}, {var} quad_perm:[2,3,0,1] {FULL}")
        rb(P, d1, d1)
        P(f"v_mul_f32 {var}, {RN:#x}, {var}", f"v_max_f32 {var}, 0, {var}")
        rb(P, var, var)
        P(f"v_add_f32 {var}, {EPS:#x}, {var}"); rb(P, var, var)
        P(f"v_sqrt_f32 {var}, {var}"); rb(P, var, var)
        P(f"v_rcp_f32 {rs}, {var}", f"v_mul_f32 {d0}, {d0}, {rs}", f"v_mul_f32 {d1}, {d1}, {rs}")
        rb(P, d0, d0); rb(P, d1, d1)
        P(f"v_mul_f32 {d0}, {d0}, v{cCB}", f"v_mul_f32 {d1}, {d1}, v{cCB+1}")
        rb(P, d0, d0); rb(P, d1, d1)
        P(f"v_add_f32 {d0}, {d0}, v{cSB}", f"v_add_f32 {d1}, {d1}, v{cSB+1}", f"v_cvt_pk_bf16_f32 v{T}, {d0}, {d1}")
        HB, GD = VA, VQ
        for k in range(4):
            bc(HB + k, T, k)
        nb = 4
        for ks in range(4):
            for mt in range(8):
                dd = vr(GD + 4 * mt, 4)
                if ks < 3:
                    P(f"v_mfma_f32_16x16x32_bf16 {dd}, {vr(HB+4*ks,4)}, {vr(w13_reg(ks, mt >> 2, mt & 3),4)}, {'0' if ks == 0 else dd}")
                else:
                    P(f"v_mfma_f32_16x16x16_bf16 {dd}, {vr(HB+12,2)}, {vr(w13_reg(3, mt >> 2, mt & 3),2)}, {dd}")
                if nb < 14:
                    bc(HB + nb, T, nb); nb += 1
        for m in range(2):
            for t in range(1, 4):
                P(f"v_mov_b32_dpp v{GD+16*m}, v{GD+16*m+4*t} quad_perm:[0,1,2,3] row_mask:{1 << t:#x} bank_mask:0xf")
        P(f"ds_write2_b32 {vKR1}, v{GD}, v{GD+16} offset0:0 offset1:1")
        P.lgk()
        P("s_barrier")
        P(f"ds_read2st64_b64 {vr(GD,4)}, {vKG} offset0:0 offset1:1", f"ds_read2st64_b64 {vr(GD+4,4)}, {vKG} offset0:2 offset1:3")
        P.lgk(1)
        P(f"v_add_f32 v{GD}, v{GD}, v{GD+2}", f"v_add_f32 v{GD+1}, v{GD+1}, v{GD+3}")
        P.lgk(0)
        g_, u_, e_ = v(GD), v(GD+1), v(GD+2)
        P(f"v_add_f32 v{GD+4}, v{GD+4}, v{GD+6}", f"v_add_f32 v{GD+5}, v{GD+5}, v{GD+7}",
          f"v_add_f32 {g_}, {g_}, v{GD+4}", f"v_add_f32 {u_}, {u_}, v{GD+5}")
        rb(P, g_, g_)
        P(f"v_mul_f32 {e_}, {LOG2E | 0x80000000:#x}, {g_}", f"v_exp_f32 {e_}, {e_}")
        rb(P, u_, u_)
        P(f"v_add_f32 {e_}, 1.0, {e_}", f"v_rcp_f32 {e_}, {e_}", f"v_mul_f32 {g_}, {g_}, {e_}")
        rb(P, g_, g_)
        P(f"v_mul_f32 {g_}, {g_}, {u_}", f"v_mov_b32_dpp {u_}, {g_} quad_perm:[1,0,3,2] {FULL}", f"v_cvt_pk_bf16_f32 {g_}, {g_}, {u_}")
        gemv_out(2, VA, w2_reg, VS, f"s{BLK+9}", lambda k: bc(VA + k, GD, 2 * k))
        stamp(5)
    else:
        G = VQ

        def gather(buf, name, last):
            ld = [f"s_mov_b32 {t0}, {buf}", f"buffer_load_dwordx4 {vr(G,4)}, {vGA}, {srd(WS_)}, {t0} offen sc1",
                  f"buffer_load_dwordx4 {vr(G+4,4)}, {vGA}, {srd(WS_)}, {t0} offen offset:3584 sc1",
                  f"s_mov_b32 {t1}, {buf + 7168}", f"buffer_load_dwordx4 {vr(G+8,4)}, {vGA}, {srd(WS_)}, {t1} offen sc1",
                  f"buffer_load_dwordx4 {vr(G+12,4)}, {last}, {srd(WS_)}, {t1} offen offset:3584 sc1"]
            iss, ver = poll(P, c, ld, [f"v_max3_u32 v{T}, v{G}, v{G+4}, v{G+8}", f"v_max_u32 v{T}, v{T}, v{G+12}",
                                       f"v_cmp_eq_u32 vcc, -1, v{T}"], name)
            iss(); ver()
            for step in (2, 1):
                for i in range(step):
                    for k in (0, 2):
                        P(f"v_pk_add_f32 {vr(G+4*i+k,2)}, {vr(G+4*i+k,2)}, {vr(G+4*(i+step)+k,2)}")
            P(f"v_permlane32_swap_b32 v{G}, v{G+2}", f"v_permlane32_swap_b32 v{G+1}, v{G+3}",
              f"v_add_f32 v{G}, v{G}, v{G+2}", f"v_add_f32 v{G+1}, v{G+1}, v{G+3}",
              f"v_permlane16_swap_b32 v{G}, v{G+1}", f"v_add_f32 v{G}, v{G}, v{G+1}",
              f"v_add_f32_dpp v{G}, v{G}, v{G} row_ror:8 {FULL}")
            rb(P, v(G), v(G))
        gather(PBUF, "p", vGA)
        P(f"v_mul_f32 v{G}, v{G}, v{cGA}"); rb(P, v(G), v(G))
        P(f"v_add_f32 v{cX}, v{G}, v{cX}"); rb(P, v(cX), v(cX))
        P(f"s_and_b64 {mT}, {mT}, {mN8}")
        stamp(4)
        gather(FBUF, "f", vWG)
        P(f"v_mul_f32 v{G}, v{G}, v{cCB}"); rb(P, v(G), v(G))
        P(f"v_add_f32 v{G}, v{G}, v{cX}", f"v_cvt_pk_bf16_f32 v{G}, v{G}, v{G}", f"s_mov_b64 exec, {mT}")
        P.vm(f"global_store_short v{cSB}, v{G}, {sp(pOUT)}")
        P("s_mov_b64 exec, -1")
        stamp(5)
    if c["stamps"]:
        P("s_waitcnt vmcnt(0)")
        stamp(6)
        P(f"s_getreg_b32 {t1}, hwreg(HW_REG_XCC_ID, 0, 4)", "v_accvgpr_write_b32 a240, s0", f"v_accvgpr_write_b32 a247, {t1}",
          f"v_accvgpr_write_b32 a248, {sSPIN}", *[f"v_accvgpr_write_b32 a{249+i}, s{r}" for i, r in enumerate(MIDS)],
          f"s_lshl_b32 {t0}, s2, 2", f"s_add_u32 {t0}, {t0}, {sW}", f"s_lshl_b32 {t0}, {t0}, 6", f"s_add_u32 {t0}, {t0}, {STAMP}",
          f"v_mov_b32 v{T}, {t0}", "s_mov_b64 exec, 1", "s_nop 1",
          f"global_store_dwordx4 v{T}, a[240:243], {sp(pWS)}", f"global_store_dwordx4 v{T}, a[244:247], {sp(pWS)} offset:16",
          f"global_store_dwordx4 v{T}, a[248:251], {sp(pWS)} offset:32", f"global_store_dwordx4 v{T}, a[252:255], {sp(pWS)} offset:48")
    P("s_endpgm")


if __name__ == "__main__":
    kw = {}
    for a in sys.argv[2:]:
        k, val = a.split("=", 1)
        kw[k] = eval(val)
    open(sys.argv[1], "w").write(build(**kw))
```

```python
import sys, os
sys.path.insert(0, os.path.dirname(os.path.abspath(__file__)))
from asmlib import Prog, pad_hazards

KN = "adaLN_cond__sliding_block_cached__glu_gated_swiglu__decode_kernel"

QBUF, HBUF, MODBUF, MLBUF, PH1END = 0x0, 0x80000, 0x82000, 0x89000, 0x8F000
PBUF, FBUF, OBUF, WSEND = 0x90000, 0x100000, 0x170000, 0x1D0000
STAMP = 0x400000
AREA_A, AREA_B, SLOT0, SCR = 0, 57344, 114688, 148480
REG_W = 14336
WQOFF = 8448
HQ, QL, OPART, ORED, STAT, GU = SCR, SCR + 2048, SCR + 3072, SCR + 9216, SCR + 11264, SCR + 11520
LDS_BYTES = SCR + 13568
OOB = 0x40000000
LOG2E = 0x3FB8AA3B
CSC = 0x3DB8AA3B
EPS = 0x3727C5AC
RN = 0x3B124925

sW, sHKV, sS, sB, sJ = "s3", "s4", "s5", "s6", "s7"
K_, V_, WS_, WA_, WB_, WO_, W2_, WQ_ = 8, 12, 16, 20, 24, 28, 32, 36
BLK = 40
sSL0, sSL1, sWST = "s56", "s57", "s58"
t0, t1, t2, t3, t4 = "s59", "s60", "s61", "s62", "s63"
pX, pK, pV, pWQ, pWO, pW1, pW3, pW2, pC, pWM, pOUT, pDBG, pWS = 64, 66, 68, 70, 72, 76, 78, 80, 82, 84, 86, 88, 90
sSPIN, sG = "s92", "s93"
mN8, mH, mPAR, mT = "s[94:95]", "s[96:97]", "s[98:99]", "s[100:101]"
srd = lambda r: f"s[{r}:{r+3}]"
sp = lambda r: f"s[{r}:{r+1}]"

vL, vLIN, vKG, vKR0, vKR1, vV, vVB, vWG, vWR, vWOR, vM0, vM1, vOL, vST, vGA, vOR = ["v%d" % i for i in range(16)]
cGA, cX, cCB, cSB = 16, 18, 20, 22
T = 24
VQ, VS, VD, VA, VACC, VW = 32, 64, 80, 96, 128, 144
v = lambda i: f"v{i}"
vr = lambda i, n: f"v[{i}:{i+n-1}]"
ar = lambda i, n: f"a[{i}:{i+n-1}]"
FULL = "row_mask:0xf bank_mask:0xf"


DEF = dict(D=5, DV=5, DI=8, DIEND=40, rot=(1, 1, 2), F0=30, H0=40, Q0=53, M0=78, C0=90, X1=92,
           W13=(10, 52), spin=1 << 20, stamps=False, padto=0, pref=True, w2late=True, kflag="nt", wflag="nt",
           mid=(8, 24, 40, 48, 62, 76, 88))
MIDS = (66, 68, 70, 76, 78, 82, 84)


def build(**kw):
    c = dict(DEF)
    c.update(kw)
    head = Prog()
    prologue(head, c)
    N, I = Prog(), Prog()
    I.uid = 1000
    program(N, c, False)
    program(I, c, True)
    lines = head.L + N.L + N.cold + ["L_progI:"] + I.L + I.cold + ["L_end:", "s_endpgm"]
    lines = pad_hazards(lines)
    body = "\n".join(("" if l.endswith(":") else "    ") + l for l in lines)
    return HEADER + body + "\n" + FOOTER


HEADER = f"""; Fused decode step: adaLN modulation -> q projection -> sliding-window GQA attention -> wo -> adaLN -> SwiGLU FFN.
; @launch grid=(256,1,1) block=(256,1,1) lds={LDS_BYTES}
.amdgcn_target "amdgcn-amd-amdhsa--gfx950"
.text
.globl {KN}
.p2align 8
.type {KN},@function
{KN}:
"""
FOOTER = f"""L_codeend:
.section .rodata,"a"
.p2align 6
.amdhsa_kernel {KN}
  .amdhsa_next_free_vgpr 512
  .amdhsa_next_free_sgpr 102
  .amdhsa_accum_offset 256
  .amdhsa_group_segment_fixed_size 0
  .amdhsa_kernarg_size 112
  .amdhsa_user_sgpr_count 2
  .amdhsa_user_sgpr_kernarg_segment_ptr 1
  .amdhsa_system_sgpr_workgroup_id_x 1
  .amdhsa_float_denorm_mode_32 3
.end_amdhsa_kernel
"""


def mk_srd(P, r, ptr, off, nrec):
    if off is None:
        P(f"s_mov_b32 s{r}, s{ptr}", f"s_mov_b32 s{r+1}, s{ptr+1}")
    else:
        P(f"s_add_u32 s{r}, s{ptr}, {off}", f"s_addc_u32 s{r+1}, s{ptr+1}, 0")
    P(f"s_mov_b32 s{r+2}, {nrec}", f"s_mov_b32 s{r+3}, 0x20000")


def prologue(P, c):
    a, b_, g_ = c["rot"]
    P("s_cmp_ge_u32 s2, 256", "s_cbranch_scc1 L_end",
      "s_load_dwordx16 s[64:79], s[0:1], 0", "s_load_dwordx8 s[80:87], s[0:1], 64", "s_load_dwordx4 s[88:91], s[0:1], 96")
    if c["stamps"] or c["padto"]:
        P("s_memrealtime s[0:1]")
    P("v_lshrrev_b32 v1, 6, v0", "v_and_b32 v0, 63, v0", f"v_readfirstlane_b32 {sW}, v1",
      f"s_and_b32 {sHKV}, s2, 7", f"s_bfe_u32 {sS}, s2, 0x20003", f"s_lshr_b32 {sB}, s2, 5",
      f"v_lshrrev_b32 {vKG}, 5, {vL}", f"v_xor_b32 {vKG}, {vKG}, {vL}", f"v_lshlrev_b32 {vKG}, 4, {vKG}",
      f"v_lshlrev_b32 {vLIN}, 4, {vL}",
      f"s_lshl_b32 {t0}, {sB}, 3", f"s_add_u32 {t0}, {t0}, {sHKV}", f"s_lshl_b32 {t0}, {t0}, 6",
      f"s_lshl_b32 {t1}, {sS}, 2", f"s_add_u32 {t1}, {t1}, {sW}", f"s_add_u32 {t0}, {t0}, {t1}",
      f"s_add_u32 {t0}, {t0}, 48", f"s_lshl_b32 {t0}, {t0}, 16",
      f"s_mul_i32 {t1}, {sHKV}, {a}", f"s_mul_i32 {t2}, {sW}, {b_}", f"s_add_u32 {t1}, {t1}, {t2}",
      f"s_lshr_b32 {t2}, s2, 3", f"s_mul_i32 {t2}, {t2}, {g_}", f"s_add_u32 {t1}, {t1}, {t2}",
      f"s_and_b32 {t1}, {t1}, 15", f"s_lshl_b32 s{BLK}, {t1}, 12",
      f"s_mul_i32 {sSL0}, {sW}, 8448", f"s_add_u32 {sSL0}, {sSL0}, {SLOT0}",
      f"s_mul_i32 {sSL1}, {sW}, {REG_W}", f"s_add_u32 {sWST}, {sSL1}, {AREA_B}",
      f"s_and_b32 {sJ}, s2, 31", f"s_and_b32 {t2}, {sB}, 1", f"s_lshl_b32 {t2}, {t2}, 2", f"s_xor_b32 {t2}, {t2}, {sJ}",
      f"s_cmp_eq_u32 {sS}, 3", f"s_cselect_b32 {sJ}, {t2}, {sJ}",
      f"s_mov_b32 {sSPIN}, 0",
      "s_waitcnt lgkmcnt(0)")
    mk_srd(P, K_, pK, t0, 0x10000)
    mk_srd(P, V_, pV, t0, 0x10000)
    P(f"s_cmp_ge_u32 {sJ}, 28", "s_cbranch_scc1 L_progI")


def rb(P, d, s):
    P(f"v_cvt_pk_bf16_f32 {d}, 0, {s}")


def poll(P, c, loads, check, name, pre=()):
    st = {}

    def issue():
        P(*pre)
        for l in loads:
            if l.startswith(("buffer_", "global_")):
                st["op"] = P.vm(l)
            else:
                P(l)

    def verify():
        slow, back = P.label(name + "_slow"), P.label(name + "_ok")
        P.wait(st["op"])
        P(*check)
        P(f"s_cbranch_vccnz {slow}", f"{back}:")
        P.cold += [f"{slow}:", f"s_add_u32 {sSPIN}, {sSPIN}, 1", f"s_cmp_gt_u32 {sSPIN}, {c['spin']}",
                   f"s_cbranch_scc1 {back}"] + list(loads) + ["s_waitcnt vmcnt(0)"] + list(check) + \
                  [f"s_cbranch_vccnz {slow}", f"s_branch {back}"]
    return issue, verify


def program(P, c, svc):
    D, DV = c["D"], c["DV"]
    ev = {}
    stamp_n = [0]

    def at(n, f):
        ev.setdefault(n, []).append(f)

    def stamp(idx):
        if c["stamps"]:
            P("s_memrealtime s[74:75]", "s_waitcnt lgkmcnt(0)", f"v_accvgpr_write_b32 a{240+idx}, s74")

    first = -28 if svc else 0
    depth = lambda n: (c["DI"] if (svc and n < c["DIEND"]) else (D if n < 64 else DV))
    sop = {}

    def done_slot(n):
        m = n + 1
        while m - depth(m) < n:
            m += 1
        return m

    def setup_blocks():
        for t in range(1, 16):
            P(f"s_add_u32 s{BLK+t}, s{BLK+t-1}, 0x1000", f"s_and_b32 s{BLK+t}, s{BLK+t}, 0xffff")

    clr = {}

    def ws_srd():
        mk_srd(P, WS_, pWS, None, WSEND)

    def flag_store(off):
        mk_srd(P, W2_, pDBG, None, 256)
        P(f"s_lshl_b32 {t0}, {sW}, 6", f"v_add_u32 v{T}, {t0}, {vL}", f"v_lshlrev_b32 v{T}, 16, v{T}",
          f"s_add_u32 {t0}, {sG}, {off}", f"v_add_u32 v{T}, {t0}, v{T}", f"v_mov_b32 v{T+1}, 1")
        return f"buffer_store_byte v{T+1}, v{T}, {srd(W2_)}, 0 offen sc1"

    def clears1():
        skip = P.label("noclr")
        P(f"s_cmp_lt_u32 {sG}, 21", f"s_cbranch_scc1 {skip}")
        for i in range(4):
            P(f"v_mov_b32 v{T+4+i}, -1")
        P(f"s_sub_u32 {t0}, {sG}, 21", f"s_lshl_b32 {t0}, {t0}, 2", f"s_add_u32 {t0}, {t0}, {sW}", f"s_lshl_b32 {t0}, {t0}, 10")
        for i in range(13):
            P(f"buffer_store_dwordx4 {vr(T+4,4)}, {vLIN}, {srd(WS_)}, {t0} offen sc1", f"s_add_u32 {t0}, {t0}, {44*1024}")
        st = flag_store(0)
        P("s_waitcnt vmcnt(0)", "s_barrier", st, f"{skip}:")

    def clear2(i):
        def f():
            if i == 0:
                for k in range(4):
                    P(f"v_mov_b32 v{VACC+k}, -1")
            P(f"s_lshl_b32 {t0}, {sG}, 2", f"s_add_u32 {t0}, {t0}, {sW}", f"s_lshl_b32 {t0}, {t0}, 10", f"s_add_u32 {t0}, {t0}, {PBUF + i*128*1024}")
            clr["op"] = P.vm(f"buffer_store_dwordx4 {vr(VACC,4)}, {vLIN}, {srd(WS_)}, {t0} offen sc1")
        return f

    def setup_common():
        P(f"s_mov_b32 s94, 0x00ff00ff", "s_mov_b32 s95, 0x00ff00ff", "s_mov_b32 s96, 0xf0f0f0f0", "s_mov_b32 s97, 0xf0f0f0f0",
          "s_mov_b32 s98, 0xff00ff00", "s_mov_b32 s99, 0xff00ff00")
        x0, x1, x2 = v(T), v(T+1), v(T+2)
        P(f"v_bfe_u32 {x0}, {vL}, 1, 1", f"v_bfe_u32 {x1}, {vL}, 2, 2", f"v_lshl_add_u32 {x0}, {x0}, 2, {x1}",
          f"v_mul_u32_u24 {x0}, 1056, {x0}", f"v_and_b32 {x1}, 1, {vL}", f"v_lshl_add_u32 {x0}, {x1}, 9, {x0}",
          f"v_lshrrev_b32 {x2}, 4, {vL}", f"v_xor_b32 {x2}, {x2}, {x1}", f"v_lshl_add_u32 {x0}, {x2}, 4, {x0}",
          f"v_add_u32 {vKR0}, {sSL0}, {x0}", f"v_add_u32 {vKR1}, {sSL1}, {x0}")
        P(f"v_lshrrev_b32 {x0}, 3, {vL}", f"v_and_b32 {x1}, 7, {vL}", f"v_lshlrev_b32 {x1}, 4, {x1}",
          f"v_lshl_add_u32 {vVB}, {x0}, 9, {x1}")
        P(f"v_and_b32 {x0}, 1, {vL}", f"v_lshlrev_b32 {x0}, 4, {x0}", f"v_mov_b32 {x1}, 0xffff", f"v_lshlrev_b32 {x0}, {x0}, {x1}",
          f"v_and_b32 {x1}, 2, {vL}", f"v_cmp_eq_u32 vcc, 0, {x1}", f"v_cndmask_b32 {vM0}, 0, {x0}, vcc",
          f"v_cndmask_b32 {vM1}, {x0}, 0, vcc")
        P(f"v_bfe_u32 {x0}, {vL}, 4, 1", f"v_and_b32 {x1}, 7, {vL}", f"v_lshlrev_b32 {x1}, 5, {x1}",
          f"v_lshl_add_u32 {x0}, {x0}, 8, {x1}", f"v_lshrrev_b32 {x1}, 5, {vL}", f"v_lshl_add_u32 {vOL}, {x1}, 4, {x0}")

    def setup_tail():
        x0, x1, x2 = v(T), v(T+1), v(T+2)
        P(f"v_lshrrev_b32 {x0}, 4, {vL}", f"v_bfe_u32 {x1}, {vL}, 2, 2", f"v_lshl_add_u32 {x0}, {x0}, 4, {x1}",
          f"v_mul_u32_u24 {x0}, 896, {x0}", f"v_and_b32 {x1}, 3, {vL}", f"v_lshl_add_u32 {x0}, {x1}, 3, {x0}",
          f"s_mul_i32 {t0}, {sW}, 224", f"v_add_u32 {vWOR}, {t0}, {x0}")
        P(f"v_bfe_u32 {x0}, {vL}, 3, 1", f"v_lshrrev_b32 {x1}, 4, {vL}", f"v_lshlrev_b32 {x1}, 6, {x1}",
          f"v_lshl_add_u32 {x0}, {x0}, 8, {x1}", f"v_and_b32 {x1}, 7, {vL}", f"v_lshl_add_u32 {x0}, {x1}, 3, {x0}",
          f"v_add_u32 {vOR}, {ORED}, {x0}")
        P(f"s_lshl_b32 {t0}, {sB}, 2", f"s_add_u32 {t0}, {t0}, {sW}", f"s_mul_i32 {t0}, {t0}, 14336",
          f"v_and_b32 {x0}, 15, {vL}", f"v_cmp_eq_u32 vcc, 0, {x0}", f"v_add_u32 {x0}, {t0}, {vL}", f"v_mov_b32 {x1}, {OOB}",
          f"v_cndmask_b32 {vST}, {x1}, {x0}, vcc")
        P(f"s_lshl_b32 {t0}, {sHKV}, 9", f"s_lshl_b32 {t1}, {sS}, 6", f"s_add_u32 {t0}, {t0}, {t1}",
          f"s_mul_i32 {t0}, {t0}, 896", f"s_add_u32 {t0}, {t0}, {sSL1}")
        mk_srd(P, WO_, pWO, t0, 256 * 896 + REG_W)

    def prefetch_code():
        if not c["pref"]:
            return
        lab = P.label("pc")
        P(f"s_getpc_b64 {mT}", f"{lab}:",
          f"s_sub_u32 s100, s100, {lab}-{KN}", "s_subb_u32 s101, s101, 0",
          f"s_lshr_b32 {t0}, s2, 3", f"s_lshl_b32 {t0}, {t0}, 2", f"s_add_u32 {t0}, {t0}, {sW}", f"s_lshl_b32 {t0}, {t0}, 8",
          f"v_and_b32 v{T}, 1, {vL}", f"v_lshl_add_u32 v{T}, v{T}, 7, {t0}", f"v_min_u32 v{T}, L_codeend-{KN}-4, v{T}",
          f"v_mov_b32 v{T+1}, s101", f"v_add_co_u32 v{T}, vcc, s100, v{T}", "s_nop 1", f"v_addc_co_u32 v{T+1}, vcc, 0, v{T+1}, vcc")
        P.vm(f"global_load_dword {vGA}, {vr(T,2)}, off")

    wq = {}

    def wq_setup():
        P(f"s_mul_i32 {t0}, {sS}, {112*8192}", f"s_lshl_b32 {t1}, {sHKV}, 10", f"s_add_u32 {t0}, {t0}, {t1}",
          f"s_lshl_b32 {t1}, {sB}, 7", f"s_add_u32 {t0}, {t0}, {t1}")
        mk_srd(P, WQ_, pWQ, t0, 111 * 8192 + 128)
        P(f"v_lshrrev_b32 v{T}, 3, {vL}", f"v_and_b32 v{T+1}, 7, {vL}", f"v_lshlrev_b32 v{T+1}, 4, v{T+1}",
          f"v_lshl_add_u32 v{T}, v{T}, 13, v{T+1}", f"s_lshl_b32 {t0}, {sW}, 18", f"v_add_u32 {vV}, {t0}, v{T}")

    def wq_load(i):
        def f():
            P(f"s_add_u32 {t0}, {sSL1}, {WQOFF + 1024*i}", f"s_mov_b32 m0, {t0}")
            wq["op"] = P.vm(f"buffer_load_dwordx4 {vV}, {srd(WQ_)}, 0 offen {c['wflag']} lds")
            P(f"v_add_u32 {vV}, 0x10000, {vV}")
        return f

    fl_issue, fl_verify = poll(P, c, [f"global_load_ubyte v{T+7}, v{T+6}, {sp(pDBG)} sc1"],
                               [f"v_cmp_ne_u32 vcc, 1, v{T+7}"], "flags",
                               pre=[f"v_min_u32 v{T+6}, 10, {vL}", f"v_add_u32 v{T+6}, 21, v{T+6}"])
    f2_issue, f2_verify = poll(P, c, [f"global_load_ubyte v{VS+5}, v{VS+4}, {sp(pDBG)} offset:128 sc1"],
                               [f"v_cmp_ne_u32 vcc, 1, v{VS+5}"], "flags2",
                               pre=[f"v_and_b32 v{VS+4}, 31, {vL}"])

    h_issue, h_verify = poll(P, c, [f"buffer_load_dwordx2 {vr(VD,2)}, v{VD+2}, {srd(WS_)}, 0 offen sc1"],
                             [f"v_cmp_eq_u32 vcc, -1, v{VD}"], "h",
                             pre=[f"s_mul_i32 {t0}, {sS}, 1792", f"s_mul_i32 {t1}, {sW}, 448", f"s_add_u32 {t0}, {t0}, {t1}",
                                  f"s_add_u32 {t0}, {t0}, {HBUF}", f"v_min_u32 v{VD+3}, 55, {vL}",
                                  f"v_lshl_add_u32 v{VD+2}, v{VD+3}, 3, {t0}", f"s_add_u32 {t1}, {t1}, {HQ}",
                                  f"v_lshl_add_u32 v{VD+3}, v{VD+3}, 3, {t1}"])

    def q_unit():
        h_verify()
        P(f"ds_write_b64 v{VD+3}, {vr(VD,2)}")
        x0, x1, x2 = v(T), v(T+1), v(T+2)
        P(f"v_lshrrev_b32 {x0}, 2, {vL}", f"v_and_b32 {x1}, 3, {vL}", f"v_lshlrev_b32 {x1}, 3, {x1}",
          f"v_lshl_add_u32 {x0}, {x0}, 7, {x1}", f"s_lshl_b32 {t0}, {sW}, 5", f"v_add_u32 {x0}, {t0}, {x0}",
          f"v_lshrrev_b32 {x1}, 4, {vL}", f"v_and_b32 {x2}, 7, {vL}", f"v_lshlrev_b32 {x2}, 3, {x2}",
          f"v_lshl_add_u32 {x1}, {x1}, 6, {x2}", f"v_add_u32 {x1}, {HQ}, {x1}")
        P.wait(wq["op"])
        if svc:
            P.wait(clr["op"])
        P.lgk()
        P("s_barrier")
        for i in range(7):
            P(f"ds_read_b64_tr_b16 {vr(VA+2*i,2)}, {x0} offset:{REG_W*(i>>1) + WQOFF + 2048*(i&1)}",
              f"ds_read_b64 {vr(VA+16+2*i,2)}, {x1} offset:{256*i}")
        P(f"s_lshl_b32 {t0}, {sHKV}, 16", f"s_lshl_b32 {t1}, {sS}, 11", f"s_add_u32 {t0}, {t0}, {t1}",
          f"s_lshl_b32 {t1}, {sB}, 8", f"s_add_u32 {t0}, {t0}, {t1}", f"s_lshl_b32 {t1}, {sW}, 6", f"s_add_u32 {t0}, {t0}, {t1}",
          f"v_and_b32 {x2}, 15, {vL}", f"v_lshlrev_b32 {x2}, 13, {x2}", f"v_and_b32 v{T+3}, 48, {vL}",
          f"v_add3_u32 {x2}, {x2}, v{T+3}, {t0}", f"v_mov_b32 v{T+3}, {OOB}", f"v_cndmask_b32 {x2}, v{T+3}, {x2}, {mN8}")
        P.lgk()
        for ks in range(3):
            P(f"v_mfma_f32_16x16x32_bf16 {vr(VD,4)}, {vr(VA+4*ks,4)}, {vr(VA+16+4*ks,4)}, {'0' if ks == 0 else vr(VD,4)}")
        P(f"v_mfma_f32_16x16x16_bf16 {vr(VD,4)}, {vr(VA+12,2)}, {vr(VA+28,2)}, {vr(VD,4)}")
        P.vm(f"buffer_store_dwordx4 {vr(VD,4)}, {x2}, {srd(WS_)}, 0 offen offset:{QBUF} sc1")
        if svc:
            P.vm(flag_store(128))

    q_issue, q_verify = poll(P, c, [f"buffer_load_dwordx4 {vr(VD+4,4)}, v{VD+12}, {srd(WS_)}, 0 offen sc1",
                                    f"buffer_load_dwordx4 {vr(VD+8,4)}, v{VD+13}, {srd(WS_)}, 0 offen sc1"],
                             [f"v_max_u32 v{VD+14}, v{VD+4}, v{VD+8}", f"v_cmp_eq_u32 vcc, -1, v{VD+14}"], "q",
                             pre=[f"s_lshl_b32 {t0}, {sHKV}, 16", f"s_lshl_b32 {t1}, {sB}, 13", f"s_add_u32 {t0}, {t0}, {t1}",
                                  f"s_lshl_b32 {t1}, {sW}, 9", f"s_add_u32 {t0}, {t0}, {t1}",
                                  f"v_lshrrev_b32 v{VD+12}, 5, {vL}", f"v_lshlrev_b32 v{VD+12}, 11, v{VD+12}",
                                  f"v_and_b32 v{VD+13}, 31, {vL}", f"v_lshlrev_b32 v{VD+13}, 4, v{VD+13}",
                                  f"v_add3_u32 v{VD+12}, v{VD+12}, v{VD+13}, {t0}", f"v_add_u32 v{VD+13}, 0x1000, v{VD+12}"])

    def q_gather():
        q_verify()
        a = VD + 4
        for i in range(4):
            P(f"v_add_f32 v{a+i}, v{a+i}, v{a+4+i}")
        x0, x1 = v(T), v(T+1)
        P(f"v_and_b32 {x0}, 31, {vL}", f"v_lshrrev_b32 {x1}, 5, {vL}", f"v_lshlrev_b32 {x1}, 2, {x1}",
          f"v_lshl_add_u32 {x0}, {x0}, 3, {x1}", f"s_lshl_b32 {t0}, {sW}, 8", f"s_add_u32 {t0}, {t0}, {QL}", f"v_add_u32 {x0}, {t0}, {x0}",
          f"v_permlane32_swap_b32 v{a}, v{a+2}", f"v_permlane32_swap_b32 v{a+1}, v{a+3}",
          f"v_add_f32 v{a}, v{a}, v{a+2}", f"v_add_f32 v{a+1}, v{a+1}, v{a+3}", f"v_cvt_pk_bf16_f32 v{a}, v{a}, v{a+1}",
          f"ds_write_b32 {x0}, v{a}",
          f"v_bfe_u32 {x0}, {vL}, 2, 1", f"v_and_b32 {x1}, 48, {vL}", f"v_lshl_add_u32 {x1}, {x0}, 9, {x1}", f"v_add_u32 {x1}, {QL}, {x1}")
        P.lgk()
        P("s_barrier")
        for ks in range(8):
            P(f"ds_read_b128 {vr(VQ+4*ks,4)}, {x1} offset:{64*ks}")

    def k_read(Tn):
        def f():
            P.wait(sop[8*Tn + 7])
            for ks in range(8):
                P(f"ds_read_b128 {ar(32*Tn + 4*ks, 4)}, {vKR1 if Tn & 1 else vKR0} offset:{64*ks}")
        return f

    def qk(Tn):
        d = VD + 4 * (Tn & 3)
        for ks in range(8):
            P(f"v_mfma_f32_16x16x32_bf16 {vr(d,4)}, {ar(32*Tn + 4*ks, 4)}, {vr(VQ+4*ks,4)}, {'0' if ks == 0 else vr(d,4)}")

    def qk_sel(Tn):
        d = VD + 4 * (Tn & 3)
        for tt in range(2):
            P(f"v_cndmask_b32 v{VS+2*Tn+tt}, v{d+2*tt}, v{d+2*tt+1}, {mPAR}")
        for tt in range(2):
            rb(P, v(VS+2*Tn+tt), v(VS+2*Tn+tt))

    vm_, vl_ = T + 4, T + 5

    def lanered(op, r, x):
        P(f"{op}_dpp {r}, {r}, {r} row_ror:8 {FULL}", f"v_mov_b32 {x}, {r}", f"v_permlane16_swap_b32 {r}, {x}",
          f"{op} {r}, {r}, {x}", f"v_mov_b32 {x}, {r}", f"v_permlane32_swap_b32 {r}, {x}", f"{op} {r}, {r}, {x}")

    def softmax1a():
        m = v(vm_)
        P(f"v_max3_f32 {m}, v{VS}, v{VS+1}, v{VS+2}")
        for i in range(3, 15, 2):
            P(f"v_max3_f32 {m}, {m}, v{VS+i}, v{VS+i+1}")
        P(f"v_max_f32 {m}, {m}, v{VS+15}")
        lanered("v_max_f32", m, v(T))
        P(f"s_mov_b32 {t0}, {CSC}")
        for i in range(16):
            P(f"v_sub_f32 v{VS+i}, v{VS+i}, {m}")
        for i in range(16):
            P(f"v_mul_f32 v{VS+i}, {t0}, v{VS+i}")

    def softmax1b():
        l = v(vl_)
        for i in range(16):
            P(f"v_exp_f32 v{VS+i}, v{VS+i}")
        P(f"v_add_f32 {l}, v{VS}, v{VS+1}")
        for i in range(2, 16):
            P(f"v_add_f32 {l}, {l}, v{VS+i}")
        lanered("v_add_f32", l, v(T))
        P(f"s_lshl_b32 {t0}, {sB}, 3", f"s_add_u32 {t0}, {t0}, {sHKV}", f"s_lshl_b32 {t0}, {t0}, 8", f"s_add_u32 {t0}, {t0}, {MLBUF}",
          f"v_and_b32 v{T+6}, 31, {vL}", f"v_lshl_add_u32 v{T+6}, v{T+6}, 3, {t0}",
          f"s_lshl_b32 {t1}, {sS}, 2", f"s_add_u32 {t1}, {t1}, {sW}", f"s_lshl_b32 {t1}, {t1}, 3", f"s_add_u32 {t0}, {t0}, {t1}",
          f"v_lshl_add_u32 v{T}, {vL}, 5, {t0}", f"v_and_b32 v{T+1}, 59, {vL}", f"v_cmp_eq_u32 vcc, 0, v{T+1}",
          f"v_mov_b32 v{T+1}, {OOB}", f"v_cndmask_b32 v{T}, v{T+1}, v{T}, vcc")
        P.vm(f"buffer_store_dwordx2 {vr(vm_,2)}, v{T}, {srd(WS_)}, 0 offen sc1")

    ml_issue, ml_verify = poll(P, c, [f"buffer_load_dwordx2 {vr(VD,2)}, v{T+6}, {srd(WS_)}, 0 offen sc1"],
                               [f"v_cmp_eq_u32 vcc, -1, v{VD+1}"], "ml")

    def softmax2a():
        ml_verify()
        M, L = v(VD+2), v(VD+3)
        P(f"v_max_f32_dpp {M}, v{VD}, v{VD} row_ror:8 {FULL}")
        for r in (4, 2, 1):
            P(f"v_max_f32_dpp {M}, {M}, {M} row_ror:{r} {FULL}")
        P(f"s_mov_b32 {t0}, {CSC}", f"v_sub_f32 {L}, v{VD}, {M}", f"v_mul_f32 {L}, {t0}, {L}", f"v_exp_f32 {L}, {L}",
          f"v_mul_f32 {L}, {L}, v{VD+1}")
        for r in (8, 4, 2, 1):
            P(f"v_add_f32_dpp {L}, {L}, {L} row_ror:{r} {FULL}")
        P(f"v_readlane_b32 {t1}, {M}, 0", f"v_readlane_b32 {t2}, {M}, 16", f"v_readlane_b32 {t3}, {L}, 0", f"v_readlane_b32 {t4}, {L}, 16",
          f"v_mov_b32 {M}, {t1}", f"v_mov_b32 v{VD}, {t2}", f"v_mov_b32 {L}, {t3}", f"v_mov_b32 v{VD+1}, {t4}",
          f"v_cndmask_b32 {M}, {M}, v{VD}, {mH}", f"v_cndmask_b32 {L}, {L}, v{VD+1}, {mH}",
          f"v_sub_f32 {M}, v{vm_}, {M}", f"v_mul_f32 {M}, {t0}, {M}", f"v_exp_f32 {M}, {M}", f"v_rcp_f32 {L}, {L}",
          f"v_mul_f32 {M}, {M}, {L}")
        for i in range(16):
            P(f"v_mul_f32 v{VS+i}, v{VS+i}, {M}")

    def softmax2b():
        for i in range(16):
            P(f"v_cvt_pk_bf16_f32 v{VS+i}, v{VS+i}, v{VS+i}")
        for i in range(16):
            P(f"v_and_b32 v{VA+2*i}, v{VS+i}, {vM0}", f"v_and_b32 v{VA+2*i+1}, v{VS+i}, {vM1}")

    def pv(vi):
        p, t = vi >> 4, vi & 15
        d = VACC + 8 * (p & 1)
        r = 4 * (vi & 31)
        P.wait(sop[64 + vi])
        for hf in range(2):
            P(f"v_mfma_f32_16x16x16_bf16 {vr(d+4*hf,4)}, {vr(VA+2*t,2)}, {ar(r+2*hf,2)}, {'0' if t == 0 else vr(d+4*hf,4)}")

    def pv_merge(p):
        d = VACC + 8 * (p & 1)
        for i in range(4):
            P(f"v_permlane32_swap_b32 v{d+i}, v{d+4+i}")
        for i in range(4):
            P(f"v_add_f32_dpp v{d+i}, v{d+4+i}, v{d+i} row_ror:8 {FULL}")

    def opart_write(p):
        d = VACC + 8 * (p & 1)
        pv_merge(p)
        if p == 0:
            P(f"s_lshl_b32 {t0}, {sW}, 9", f"s_add_u32 {t0}, {t0}, {OPART}", f"v_add_u32 v{T+7}, {t0}, {vOL}")
        P(f"s_mov_b64 exec, {mN8}", f"ds_write_b128 v{T+7}, {vr(d,4)} offset:{2048*p}", "s_mov_b64 exec, -1")

    def opart_publish():
        x = v(T)
        P(f"s_lshl_b32 {t0}, {sW}, 11", f"s_add_u32 {t0}, {t0}, {OPART}", f"v_add_u32 {x}, {t0}, {vOL}")
        for w in range(4):
            P(f"ds_read_b128 {vr(VD+4*w,4)}, {x} offset:{512*w}")
        P(f"s_add_u32 {t0}, {sS}, {sW}", f"s_add_u32 {t0}, {t0}, 1", f"s_and_b32 {t0}, {t0}, 3", f"s_lshl_b32 {t0}, {t0}, 3",
          f"s_and_b32 {t1}, s2, 0xe7", f"s_or_b32 {t0}, {t0}, {t1}", f"s_mul_i32 {t0}, {t0}, 1536",
          f"s_lshl_b32 {t1}, {sW}, 9", f"s_add_u32 {t1}, {t1}, {OBUF}", f"s_cmp_eq_u32 {sW}, 3", f"s_cselect_b32 {t1}, {OOB}, {t1}",
          f"s_add_u32 {t0}, {t0}, {t1}", f"s_mul_i32 {t2}, s2, 1536", f"s_add_u32 {t1}, {t1}, {t2}",
          f"v_add_u32 v{T+1}, {t0}, {vOL}", f"v_mov_b32 v{T+2}, {OOB}", f"v_cndmask_b32 v{T+1}, v{T+2}, v{T+1}, {mN8}",
          f"v_add_u32 v{T+6}, {t1}, {vOL}")
        P.lgk()
        for i in range(4):
            P(f"v_add_f32 v{VD+i}, v{VD+i}, v{VD+4+i}", f"v_add_f32 v{VD+8+i}, v{VD+8+i}, v{VD+12+i}")
        for i in range(4):
            P(f"v_add_f32 v{VD+4+i}, v{VD+i}, v{VD+8+i}")
        P.vm(f"buffer_store_dwordx4 {vr(VD+4,4)}, v{T+1}, {srd(WS_)}, 0 offen sc1")

    of_issue, of_verify = poll(P, c, [f"buffer_load_dwordx4 {vr(VD,4)}, v{T+6}, {srd(WS_)}, 0 offen sc1"],
                               [f"v_cmp_eq_u32 vcc, -1, v{VD}"], "of")

    lin = {}

    def lin_load(r, key, base, i, goff):
        def f():
            P(f"s_add_u32 {t0}, {base}, {1024*i}", f"s_mov_b32 m0, {t0}", f"s_mov_b32 {t1}, {goff + 1024*i}")
            lin[key] = P.vm(f"buffer_load_dwordx4 {vLIN}, {srd(r)}, {t1} offen {c['wflag']} lds")
        return f

    def tr_rows(area, dst, lo, hi):
        x = vWOR
        if area:
            x = v(T+3)
            P(f"v_add_u32 {x}, {area}, {vWOR}")
        n = 0
        for t in range(7):
            for ks in range(2):
                for u in range(2):
                    if lo <= n < hi:
                        P(f"ds_read_b64_tr_b16 {ar(dst(ks, t) + 2*u, 2)}, {x} offset:{896*(8*ks + 4*u) + 32*t}")
                    n += 1

    wo_reg = lambda ks, t: 128 + 16 * t + 4 * ks
    w2_reg = lambda ks, t: 8 * t + 4 * ks

    if not svc:
        def w13_setup():
            P(f"s_lshl_b32 {t0}, {sJ}, 7", f"s_mul_i32 {t1}, {sW}, {112*3584}", f"s_add_u32 {t0}, {t0}, {t1}")
            mk_srd(P, WA_, pW1, t0, 111 * 3584 + 128)
            mk_srd(P, WB_, pW3, t0, 111 * 3584 + 128)
            x0, x1 = v(T), v(T+1)
            P(f"v_lshrrev_b32 {x0}, 3, {vL}", f"v_mul_u32_u24 {x0}, 3584, {x0}", f"v_and_b32 {x1}, 7, {vL}",
              f"v_lshl_add_u32 {vWG}, {x1}, 4, {x0}",
              f"v_bfe_u32 {x0}, {vL}, 4, 1", f"v_mul_u32_u24 {x0}, 2112, {x0}", f"v_bfe_u32 {x1}, {vL}, 3, 1",
              f"v_lshl_add_u32 {x0}, {x1}, 9, {x0}", f"v_lshrrev_b32 {x1}, 5, {vL}", f"v_lshl_add_u32 {x0}, {x1}, 8, {x0}",
              f"v_bfe_u32 {x1}, {vL}, 2, 1", f"v_lshl_add_u32 {x0}, {x1}, 7, {x0}", f"v_and_b32 {x1}, 3, {vL}",
              f"v_lshl_add_u32 {x0}, {x1}, 3, {x0}", f"v_add_u32 {vWR}, {sWST}, {x0}")

        w13_reg = lambda ks, m, t: VW + 32 * ks + 4 * (4 * m + t) if ks < 3 else VW + 96 + 2 * (4 * m + t)
        w13op = {}

        def w13_load(ch, q, u):
            ks, m = ch >> 1, ch & 1

            def f():
                P(f"s_add_u32 {t0}, {sWST}, {4224*(ch % 3) + 1056*(2*q + u)}", f"s_mov_b32 m0, {t0}",
                  f"s_mov_b32 {t1}, {(56*q + 16*ks + 8*u) * 3584}")
                w13op[ch] = P.vm(f"buffer_load_dwordx4 {vWG}, {srd(WB_ if m else WA_)}, {t1} offen {c['wflag']} lds")
            return f

        def w13_read(ch):
            ks, m = ch >> 1, ch & 1

            def f():
                P.wait(w13op[ch])
                for t in range(4):
                    for u in range(2 if ks < 3 else 1):
                        P(f"ds_read_b64_tr_b16 {vr(w13_reg(ks, m, t) + 2*u, 2)}, {vWR} offset:{4224*(ch % 3) + 1056*u + 32*t}")
            return f

        at(3, setup_blocks)
        at(D - 1, ws_srd)
        at(D - 1, wq_setup)
        at(D - 1, setup_common)
        at(D - 1, w13_setup)
        for i in range(4):
            at(D - 1 + 2 * i, wq_load(i))
        at(D - 1, prefetch_code)
        lo, hi = c["W13"]
        lst = [(ch, q, u) for ch in range(8) for q in range(2) for u in range(2 if ch < 6 else 1)]
        pos = [lo + (hi - lo) * i // len(lst) for i in range(len(lst))]
        rd = {}
        for (ch, q, u), n in zip(lst, pos):
            if ch >= 3:
                assert n > rd[ch - 3], (ch, n, rd)
            at(n, w13_load(ch, q, u))
            rd[ch] = done_slot(n + 1)
        for ch in range(8):
            ev.setdefault(rd[ch], []).insert(0, w13_read(ch))
            ev.setdefault(rd[ch] + 1, []).insert(0, P.lgk)
        w13_done = rd[7] + 1
        at(c["F0"], fl_issue)
        at(done_slot(c["F0"] + 1), fl_verify)
    else:
        CV, XV, SB = VQ, VQ + 8, VQ + 16
        PIV, XT = VS, VS + 2
        mop = {}

        def mod_setup():
            P(f"s_mul_i32 {t2}, {sG}, 37", f"s_lshr_b32 {t2}, {t2}, 8",
              f"s_mul_i32 {t3}, {t2}, 7", f"s_sub_u32 {t3}, {sG}, {t3}",
              f"s_mul_i32 {t0}, {t2}, 1792", f"s_lshl_b32 {t1}, {t3}, 7", f"s_add_u32 {t0}, {t0}, {t1}",
              f"s_mul_i32 {t1}, {sW}, {112*5376}", f"s_add_u32 {t0}, {t0}, {t1}",
              f"s_cmp_lt_u32 {sG}, 21", f"s_cselect_b32 {t4}, {111*5376 + 1024}, 0", f"s_cselect_b32 {t0}, {t0}, 0")
            mk_srd(P, WA_, pWM, t0, t4)
            x0, x1 = v(T+4), v(T+5)
            P(f"v_lshrrev_b32 {x0}, 3, {vL}", f"v_mul_u32_u24 {x0}, 5376, {x0}", f"v_and_b32 {x1}, 7, {vL}",
              f"v_lshl_add_u32 {vWG}, {x1}, 4, {x0}",
              f"v_mul_u32_u24 {x0}, 896, {x1}", f"v_mov_b32 v{PIV+1}, {x0}", f"v_lshrrev_b32 {x1}, 4, {vL}", f"v_lshl_add_u32 {x0}, {x1}, 3, {x0}",
              f"s_lshl_b32 {t0}, {t3}, 7", f"s_lshl_b32 {t1}, {sW}, 5", f"s_add_u32 {t0}, {t0}, {t1}", f"v_add_u32 v{XT}, {t0}, {x0}",
              f"s_mul_i32 {t0}, {sW}, 224", f"v_add_u32 {x0}, {t0}, {x0}", f"v_and_b32 {x1}, 8, {vL}", f"v_lshl_add_u32 {x1}, {x1}, 2, {x0}")
            for i in range(4):
                P.vm(f"global_load_dwordx2 {vr(CV+2*i,2)}, {x0 if i == 3 else x1}, {sp(pC)} offset:{64*i}")
            for i in range(4):
                P.vm(f"global_load_dwordx2 {vr(XV+2*i,2)}, {x0 if i == 3 else x1}, {sp(pX)} offset:{64*i}")
            P.vm(f"global_load_ushort v{PIV}, v{PIV+1}, {sp(pX)}")
            mop["in"] = P.vm(f"global_load_dwordx2 {vr(XT,2)}, v{XT}, {sp(pX)}")

        def silu_c(i):
            def f():
                P.wait(mop["in"])
                x = [v(T+k) for k in range(4)]
                y = [v(T+4+k) for k in range(4)]
                P(f"v_lshlrev_b32 {x[0]}, 16, v{CV+2*i}", f"v_and_b32 {x[1]}, 0xffff0000, v{CV+2*i}",
                  f"v_lshlrev_b32 {x[2]}, 16, v{CV+2*i+1}", f"v_and_b32 {x[3]}, 0xffff0000, v{CV+2*i+1}")
                for k in range(4):
                    P(f"v_mul_f32 {y[k]}, {LOG2E | 0x80000000:#x}, {x[k]}")
                for k in range(4):
                    P(f"v_exp_f32 {y[k]}, {y[k]}")
                for k in range(4):
                    P(f"v_add_f32 {y[k]}, 1.0, {y[k]}")
                for k in range(4):
                    P(f"v_rcp_f32 {y[k]}, {y[k]}")
                for k in range(4):
                    P(f"v_mul_f32 {x[k]}, {x[k]}, {y[k]}")
                P(f"v_cvt_pk_bf16_f32 v{SB+4*i}, {x[0]}, {x[1]}", f"v_cvt_pk_bf16_f32 v{SB+4*i+1}, {x[2]}, {x[3]}")
                if i < 3:
                    P(f"v_mov_b32_dpp v{SB+4*i+2}, v{SB+4*i} row_ror:8 {FULL}", f"v_mov_b32_dpp v{SB+4*i+3}, v{SB+4*i+1} row_ror:8 {FULL}")
            return f

        S1, S2 = VS + 4, VS + 5

        def stats(i):
            def f():
                x = [v(T+k) for k in range(4)]
                if i == 0:
                    P(f"v_lshlrev_b32 v{PIV}, 16, v{PIV}", f"v_mov_b32 v{S1}, 0", f"v_mov_b32 v{S2}, 0")
                if i == 3:
                    P(f"s_mov_b64 exec, {mN8}")
                P(f"v_lshlrev_b32 {x[0]}, 16, v{XV+2*i}", f"v_and_b32 {x[1]}, 0xffff0000, v{XV+2*i}",
                  f"v_lshlrev_b32 {x[2]}, 16, v{XV+2*i+1}", f"v_and_b32 {x[3]}, 0xffff0000, v{XV+2*i+1}")
                for k in range(4):
                    P(f"v_sub_f32 {x[k]}, {x[k]}, v{PIV}")
                for k in range(4):
                    P(f"v_add_f32 v{S1}, v{S1}, {x[k]}", f"v_fmac_f32 v{S2}, {x[k]}, {x[k]}")
                if i == 3:
                    P("s_mov_b64 exec, -1")
                    lanered("v_add_f32", v(S1), v(T))
                    lanered("v_add_f32", v(S2), v(T))
                    P(f"s_lshl_b32 {t0}, {sW}, 6", f"s_add_u32 {t0}, {t0}, {STAT}", f"v_and_b32 v{T}, 7, {vL}",
                      f"v_lshl_add_u32 v{T}, v{T}, 3, {t0}", f"ds_write_b64 v{T}, {vr(S1,2)}")
            return f

        mreg = lambda m, t: VW + 14 * (4 * m + t)

        def mod_read(m):
            def f():
                P.wait(sop[-28 + 14 * m + 13])
                if m == 0:
                    P(f"v_lshrrev_b32 v{T}, 2, {vL}", f"v_and_b32 v{T+1}, 3, {vL}", f"v_lshlrev_b32 v{T+1}, 3, v{T+1}",
                      f"v_lshl_add_u32 v{T}, v{T}, 7, v{T+1}", f"v_add_u32 {vWR}, {sSL1}, v{T}")
                else:
                    P(f"v_add_u32 {vWR}, {AREA_B}, {vWR}")
                for t in range(4):
                    for i in range(7):
                        P(f"ds_read_b64_tr_b16 {vr(mreg(m, t) + 2*i, 2)}, {vWR} offset:{2048*i + 32*t}")
            return f

        def mod_mfma(m):
            def f():
                P.lgk()
                for ks in range(4):
                    for t in range(4):
                        d = VA + 4 * (4 * m + t)
                        if ks < 3:
                            P(f"v_mfma_f32_16x16x32_bf16 {vr(d,4)}, {vr(mreg(m,t)+4*ks,4)}, {vr(SB+4*ks,4)}, {'0' if ks == 0 else vr(d,4)}")
                        else:
                            P(f"v_mfma_f32_16x16x16_bf16 {vr(d,4)}, {vr(mreg(m,t)+12,2)}, {vr(SB+12,2)}, {vr(d,4)}")
            return f

        def mod_final():
            x0, x1, x2 = v(T), v(T+1), v(T+2)
            P(f"v_lshrrev_b32 {x0}, 4, {vL}", f"v_and_b32 {x1}, 7, {vL}", f"v_lshlrev_b32 {x1}, 4, {x1}",
              f"v_lshl_add_u32 {x0}, {x0}, 7, {x1}", f"v_add_u32 {x1}, {sWST}, {x0}", f"s_mov_b64 exec, {mN8}")
            for mt in range(8):
                P(f"ds_write_b128 {x1}, {vr(VA+4*mt,4)} offset:{512*mt}")
            P("s_mov_b64 exec, -1", f"v_and_b32 {x2}, 8, {vL}", f"v_lshl_add_u32 {x0}, {x2}, 8, {x0}",
              f"s_lshl_b32 {t0}, {sW}, 9", f"s_add_u32 {t0}, {t0}, {AREA_B}", f"v_add_u32 {x0}, {t0}, {x0}",
              f"v_and_b32 {x2}, 7, {vL}", f"v_lshlrev_b32 {x2}, 3, {x2}", f"v_add_u32 {x2}, {STAT}, {x2}")
            P.lgk()
            P("s_barrier")
            for w in range(4):
                P(f"ds_read_b128 {vr(VA+4*w,4)}, {x0} offset:{REG_W*w}", f"ds_read_b64 {vr(VA+16+2*w,2)}, {x2} offset:{64*w}")
            P(f"s_mul_i32 {t2}, {sG}, 37", f"s_lshr_b32 {t2}, {t2}, 8", f"s_mul_i32 {t3}, {t2}, 7", f"s_sub_u32 {t3}, {sG}, {t3}",
              f"s_mul_i32 {t0}, {t2}, {16*896}", f"s_lshl_b32 {t1}, {t3}, 7", f"s_add_u32 {t0}, {t0}, {t1}",
              f"s_lshl_b32 {t1}, {sW}, 5", f"s_add_u32 {t0}, {t0}, {t1}", f"s_add_u32 {t0}, {t0}, {MODBUF - 16*896}",
              f"s_cmp_lt_u32 {sG}, 21", f"s_cselect_b32 {t0}, {t0}, {OOB}",
              f"v_and_b32 {x1}, 15, {vL}", f"v_mul_u32_u24 {x1}, 896, {x1}", f"v_lshrrev_b32 v{T+3}, 4, {vL}",
              f"v_lshl_add_u32 {x1}, v{T+3}, 3, {x1}", f"v_add_u32 {x1}, {t0}, {x1}")
            P.lgk()
            m = VA
            for i in range(4):
                P(f"v_add_f32 v{m+i}, v{m+i}, v{m+4+i}", f"v_add_f32 v{m+8+i}, v{m+8+i}, v{m+12+i}")
            for i in range(4):
                P(f"v_add_f32 v{m+i}, v{m+i}, v{m+8+i}")
            skip = P.label("noh")
            P(f"s_cmp_lt_u32 {sG}, 7", f"s_cbranch_scc0 {skip}")
            s = VA + 16
            mean, var, rs = v(s+2), v(s+3), v(s+4)
            P(f"v_add_f32 v{s}, v{s}, v{s+2}", f"v_add_f32 v{s+1}, v{s+1}, v{s+3}", f"v_add_f32 v{s+4}, v{s+4}, v{s+6}",
              f"v_add_f32 v{s+5}, v{s+5}, v{s+7}", f"v_add_f32 v{s}, v{s}, v{s+4}", f"v_add_f32 v{s+1}, v{s+1}, v{s+5}",
              f"v_mul_f32 v{s}, {RN:#x}, v{s}", f"v_mul_f32 v{s+1}, {RN:#x}, v{s+1}",
              f"v_add_f32 {mean}, v{PIV}, v{s}", f"v_fma_f32 {var}, -v{s}, v{s}, v{s+1}", f"v_max_f32 {var}, 0, {var}")
            rb(P, mean, mean); rb(P, var, var)
            P(f"v_add_f32 {var}, {EPS:#x}, {var}"); rb(P, var, var)
            P(f"v_sqrt_f32 {var}, {var}"); rb(P, var, var)
            P(f"v_rcp_f32 {rs}, {var}")
            y = [v(m+4+k) for k in range(4)]
            z = [v(m+8+k) for k in range(4)]
            e = [v(m+12+k) for k in range(4)]
            P(f"v_lshlrev_b32 {y[0]}, 16, v{XT}", f"v_and_b32 {y[1]}, 0xffff0000, v{XT}",
              f"v_lshlrev_b32 {y[2]}, 16, v{XT+1}", f"v_and_b32 {y[3]}, 0xffff0000, v{XT+1}")
            for k in range(4):
                P(f"v_sub_f32 {y[k]}, {y[k]}, {mean}"); rb(P, y[k], y[k])
                P(f"v_mul_f32 {z[k]}, {y[k]}, {rs}", f"v_fma_f32 {e[k]}, -{z[k]}, {var}, {y[k]}", f"v_fma_f32 {y[k]}, {e[k]}, {rs}, {z[k]}")
                rb(P, y[k], y[k])
                rb(P, v(m+k), v(m+k))
                P(f"v_add_f32 {z[k]}, 1.0, v{m+k}"); rb(P, z[k], z[k])
                P(f"v_mul_f32 {z[k]}, {y[k]}, {z[k]}"); rb(P, z[k], z[k])
            for k in range(4):
                P(f"v_add_f32_dpp v{m+k}, v{m+k}, {z[k]} row_ror:8 {FULL}")
            P(f"s_lshl_b32 {t0}, {sG}, 10", f"s_lshl_b32 {t1}, {sW}, 8", f"s_add_u32 {t0}, {t0}, {t1}", f"s_add_u32 {t0}, {t0}, {HBUF}",
              f"v_lshrrev_b32 {x0}, 4, {vL}", f"v_and_b32 {x1}, 7, {vL}", f"v_lshlrev_b32 {x1}, 3, {x1}", f"v_lshl_add_u32 {x0}, {x0}, 6, {x1}",
              f"v_add_u32 {x0}, {t0}, {x0}", f"v_mov_b32 {x1}, {OOB}", f"v_cndmask_b32 {x1}, {x1}, {x0}, {mPAR}",
              f"{skip}:",
              f"v_cvt_pk_bf16_f32 v{m}, v{m}, v{m+1}", f"v_cvt_pk_bf16_f32 v{m+1}, v{m+2}, v{m+3}",
              f"v_min_u32 v{m}, -2, v{m}", f"v_min_u32 v{m+1}, -2, v{m+1}")
            fl_verify()
            P.vm(f"buffer_store_dwordx2 {vr(m,2)}, {x1}, {srd(WS_)}, 0 offen sc1")

        P(f"s_lshl_b32 {sG}, {sB}, 2", f"s_add_u32 {sG}, {sG}, {sJ}", f"s_sub_u32 {sG}, {sG}, 28")
        ws_srd()
        clears1()
        mod_setup()
        at(-28 + c["DI"] - 1, setup_common)
        at(-28 + c["DI"] - 1, setup_blocks)
        n0 = -28 + c["DI"]
        for i in range(4):
            at(n0 + i, silu_c(i))
            at(n0 + 4 + i, stats(i))
        at(n0 + 8, wq_setup)
        at(n0 + 9, prefetch_code)
        ra, rb_ = done_slot(-15), done_slot(-1)
        at(ra, mod_read(0))
        at(ra + 1, mod_mfma(0))
        for i in range(4):
            at(12 + 2 * i, wq_load(i))
        at(0, fl_issue)
        for i in range(10):
            at(19 + 2 * i, clear2(i))
        at(rb_, mod_read(1))
        at(rb_, mod_mfma(1))
        at(rb_ + 1, mod_final)
        w13_done = rb_ + 1

    at(30, setup_tail)
    at(c["H0"], h_issue)
    at(done_slot(c["H0"] + 1), q_unit)
    at(c["Q0"], q_issue)
    nq = done_slot(c["Q0"] + 1)
    assert nq >= w13_done
    at(nq, q_gather)
    kr = {}
    for Tn in range(8):
        kr[Tn] = done_slot(8 * Tn + 7)
        assert kr[Tn] < 8 * Tn + 16
        ev.setdefault(kr[Tn], []).insert(0, k_read(Tn))
        at(kr[Tn], P.lgk)
    n, used = nq + 1, 0
    qks = {}
    for Tn in range(8):
        if n <= kr[Tn]:
            n, used = kr[Tn] + (0 if Tn == 7 else 1), 0
        at(n, P.lgk)
        at(n, (lambda Tn: lambda: qk(Tn))(Tn))
        qks[Tn] = n
        if Tn < 4:
            assert n < 64 + 8 * Tn
        used += 1
        if used == 2:
            n, used = n + 1, 0
    for Tn in range(8):
        ev.setdefault(qks[Tn] + 1, []).insert(0, (lambda Tn: lambda: qk_sel(Tn))(Tn))
    n = qks[7] + 1
    at(n, softmax1a)
    at(n + 1, softmax1b)
    assert c["M0"] > n + 1
    at(c["M0"], ml_issue)
    nm = done_slot(c["M0"] + 1)
    at(nm, softmax2a)
    at(nm + 1, softmax2b)
    pv0 = nm + 2
    vi, n = 0, pv0
    pend = {}
    while n < 128:
        k = 0
        while k < 6 and vi < 64 and done_slot(64 + vi) <= n:
            assert n < 64 + 32 + vi, "V ring overrun"
            at(n, (lambda vi: lambda: pv(vi))(vi))
            if vi & 15 == 15:
                pend[vi >> 4] = n
            vi += 1
            k += 1
        n += 1
    for p in range(3):
        ev.setdefault(pend[p] + 1, []).insert(0, (lambda p: lambda: opart_write(p))(p))
    X3 = pend[2] + 1
    X1 = c["X1"]
    a0, a1 = nq + 1, X1 - DV - 1
    for i in range(14):
        at(a0 + (a1 - a0) * i // 14, lin_load(WO_, "wo0", sWST, i, 0))

    def bar_x1():
        P.wait(lin["wo0"])
        P("s_barrier")
        tr_rows(AREA_B, wo_reg, 0, 14)
    at(X1, bar_x1)
    at(X1 + 1, lambda: tr_rows(AREA_B, wo_reg, 14, 28))
    a0, a1 = X1, X3 - DV - 1
    for i in range(14):
        at(a0 + (a1 - a0) * i // 14, lin_load(WO_, "wo1", sSL1, i, 256 * 896))

    def bar_x3():
        P.wait(lin["wo1"])
        P.lgk()
        P("s_barrier")
        opart_publish()
    at(X3, bar_x3)
    at(X3 + 1, lambda: tr_rows(AREA_A, lambda ks, t: wo_reg(ks + 2, t), 0, 14))
    at(X3 + 2, lambda: tr_rows(AREA_A, lambda ks, t: wo_reg(ks + 2, t), 14, 28))

    if not svc:
        cpre = [f"v_and_b32 v{T}, 15, {vL}", f"v_cmp_gt_u32 {mT}, 14, v{T}", f"v_min_u32 v{T}, 13, v{T}",
                f"v_bfe_u32 v{T+1}, {vL}, 4, 1", f"v_mad_u32_u24 v{T}, v{T+1}, 14, v{T}",
                f"v_lshrrev_b32 v{T+1}, 5, {vL}",
                f"s_lshl_b32 {t0}, {sB}, 2", f"s_add_u32 {t0}, {t0}, {sW}", f"s_mul_i32 {t1}, {t0}, 14336", f"s_add_u32 {t1}, {t1}, {PBUF}",
                f"v_mul_u32_u24 v{T+2}, 448, v{T+1}", f"v_lshl_add_u32 v{T+2}, v{T}, 4, v{T+2}", f"v_add_u32 v{T+2}, {t1}, v{T+2}",
                f"v_mov_b32 {vGA}, {OOB}", f"v_cndmask_b32 {vGA}, {vGA}, v{T+2}, {mT}",
                f"v_lshlrev_b32 v{T+1}, 2, v{T+1}", f"v_lshl_add_u32 v{T}, v{T}, 3, v{T+1}",
                f"s_mul_i32 {t0}, {t0}, 224", f"v_add_u32 v{VS}, {t0}, v{T}", f"v_add_u32 v{VS+1}, {MODBUF}, v{VS}",
                f"v_add_u32 v{VS+2}, {8*896}, v{VS+1}", f"v_add_u32 v{VS+3}, {16*896}, v{VS+1}"]
        c_issue, c_verify = poll(P, c, [f"global_load_dword v{cX+1}, v{VS}, {sp(pX)}",
                                        f"buffer_load_dword v{cGA+1}, v{VS+1}, {srd(WS_)}, 0 offen sc1",
                                        f"buffer_load_dword v{cSB+1}, v{VS+2}, {srd(WS_)}, 0 offen sc1",
                                        f"buffer_load_dword v{cCB+1}, v{VS+3}, {srd(WS_)}, 0 offen sc1"],
                                 [f"v_max3_u32 v{cGA}, v{cGA+1}, v{cSB+1}, v{cCB+1}", f"v_cmp_eq_u32 vcc, -1, v{cGA}"], "mod", pre=cpre)

        def consts():
            c_verify()
            for r in (cGA, cX, cCB, cSB):
                P(f"v_lshlrev_b32 v{r}, 16, v{r+1}", f"v_and_b32 v{r+1}, 0xffff0000, v{r+1}")
            for k in range(2):
                P(f"v_add_f32 v{cCB+k}, 1.0, v{cCB+k}")
                rb(P, v(cCB+k), v(cCB+k))
            P(f"s_mul_i32 {t0}, {sJ}, {64*896}", f"s_add_u32 {t0}, {t0}, {sSL1}")
            mk_srd(P, W2_, pW2, t0, REG_W)
    else:
        cpre = [f"v_and_b32 v{T}, 7, {vL}", f"v_cmp_gt_u32 {mT}, 7, v{T}", f"v_min_u32 v{T}, 6, v{T}",
                f"s_lshl_b32 {t0}, {sB}, 2", f"s_add_u32 {t0}, {t0}, {sJ}", f"s_sub_u32 {t0}, {t0}, 28",
                f"s_mul_i32 {t1}, {t0}, 14336", f"s_mul_i32 {t2}, {sW}, 112", f"s_add_u32 {t1}, {t1}, {t2}",
                f"v_lshrrev_b32 v{T+1}, 3, {vL}", f"v_mul_u32_u24 v{T+2}, 448, v{T+1}", f"v_lshl_add_u32 v{T+2}, v{T}, 4, v{T+2}",
                f"v_add_u32 v{T+2}, {t1}, v{T+2}", f"v_mov_b32 v{T+1}, {OOB}", f"v_cndmask_b32 {vGA}, v{T+1}, v{T+2}, {mT}",
                f"v_cmp_gt_u32 vcc, 32, {vL}", f"v_cndmask_b32 {vWG}, v{T+1}, {vGA}, vcc",
                f"v_lshrrev_b32 v{T+1}, 5, {vL}", f"v_lshlrev_b32 v{T+1}, 2, v{T+1}", f"v_lshl_add_u32 v{T}, v{T}, 3, v{T+1}",
                f"s_mul_i32 {t0}, {t0}, 224", f"s_mul_i32 {t2}, {sW}, 56", f"s_add_u32 {t0}, {t0}, {t2}",
                f"v_add_u32 v{VS}, {t0}, v{T}", f"v_add_u32 v{VS+1}, {MODBUF}, v{VS}", f"v_add_u32 v{VS+2}, {24*896}, v{VS+1}"]
        c_issue, c_verify = poll(P, c, [f"global_load_dword v{cX+1}, v{VS}, {sp(pX)}",
                                        f"buffer_load_dword v{cGA+1}, v{VS+1}, {srd(WS_)}, 0 offen sc1",
                                        f"buffer_load_dword v{cCB+1}, v{VS+2}, {srd(WS_)}, 0 offen sc1"],
                                 [f"v_max_u32 v{cGA}, v{cGA+1}, v{cCB+1}", f"v_cmp_eq_u32 vcc, -1, v{cGA}"], "mod", pre=cpre)

        def consts():
            c_verify()
            P(f"v_and_b32 v{T}, 16, {vL}")
            for r in (cGA, cX, cCB):
                P(f"v_lshrrev_b32 v{r}, v{T}, v{r+1}", f"v_lshlrev_b32 v{r}, 16, v{r}")
            P(f"v_lshrrev_b32 v{T}, 3, v{T}", f"v_add_u32 v{cSB}, v{VS}, v{T}")
    assert c["C0"] > nm + 1
    at(c["C0"], f2_issue)
    at(c["C0"], c_issue)
    at(done_slot(c["C0"] + 1), f2_verify)
    at(done_slot(c["C0"] + 1), consts)
    if not svc:
        a0, a1 = X3 + 1, 128
        for i in range(14):
            at(a0 + (a1 - a0) * i // 14, lin_load(W2_, "w2", sWST, i, 0))
    at(127, of_issue)

    for n in range(first, 128):
        if n - depth(n) >= first:
            P.wait(sop[n - depth(n)])
        if n < 0:
            m, i = (n + 28) // 14, (n + 28) % 14
            P(f"s_add_u32 {t0}, {sWST if m else sSL1}, {1024*i}", f"s_mov_b32 m0, {t0}", f"s_mov_b32 {t1}, {8*i*5376 + 896*m}")
            sop[n] = P.vm(f"buffer_load_dwordx4 {vWG}, {srd(WA_)}, {t1} offen {c['wflag']} lds")
        elif n < 64:
            Tn, j = n >> 3, n & 7
            off = 1056 * j - 1024 * (j & 3)
            base = sSL1 if Tn & 1 else sSL0
            if off:
                P(f"s_add_u32 m0, {base}, {off}")
            else:
                P(f"s_mov_b32 m0, {base}")
            sop[n] = P.vm(f"buffer_load_dwordx4 {vKG}, {srd(K_)}, s{BLK + (n >> 2)} offen offset:{1024*(j & 3)} {c['kflag']} lds")
        else:
            vi_ = n - 64
            if vi_ & 15 == 0:
                P(f"s_add_u32 {t0}, {sS}, {(vi_ >> 4) + 1}", f"s_and_b32 {t0}, {t0}, 3", f"s_lshl_b32 {t0}, {t0}, 7",
                  f"v_add_u32 {vV}, {t0}, {vVB}")
            sop[n] = P.vm(f"buffer_load_dwordx4 {ar(4*(vi_ & 31), 4)}, {vV}, {srd(V_)}, s{BLK + (vi_ & 15)} offen {c['kflag']}")
        for f in ev.pop(n, []):
            f()
        if n == 100:
            stamp(1)
        if c["stamps"] and n in c["mid"]:
            r = MIDS[c["mid"].index(n)]
            P(f"s_memrealtime s[{r}:{r+1}]")
    assert not ev, ev.keys()

    P(f"s_lshl_b32 {t0}, {sHKV}, 2", f"s_add_u32 {t0}, {t0}, {sS}", f"s_mul_i32 {t0}, {t0}, 448", f"s_add_u32 s{BLK+8}, {t0}, {PBUF}",
      f"s_mul_i32 {t0}, {sJ}, 448", f"s_add_u32 s{BLK+9}, {t0}, {FBUF}",
      f"s_lshl_b32 {t0}, {sW}, 9", f"s_add_u32 {t0}, {t0}, {ORED}", f"v_add_u32 v{T+7}, {t0}, {vOL}")
    if not svc:
        for i in range(8):
            P(f"s_add_u32 {t0}, {sHKV}, {i+1}", f"s_and_b32 {t0}, {t0}, 7", f"s_mul_i32 s{BLK+i}, {t0}, 1792")
    while vi < 64:
        pv(vi)
        vi += 1
    stamp(2)
    of_verify()
    P.waitall()
    d = VACC + 8
    pv_merge(3)
    for i in range(4):
        P(f"v_add_f32 v{d+i}, v{d+i}, v{VD+i}")
    P(f"s_mov_b64 exec, {mN8}", f"ds_write_b128 v{T+7}, {vr(d,4)}", "s_mov_b64 exec, -1")
    P.lgk()
    P("s_barrier")
    P(f"ds_read2st64_b64 {vr(VD,4)}, {vOR} offset0:0 offset1:1", f"ds_read2st64_b64 {vr(VD+4,4)}, {vOR} offset0:2 offset1:3")
    P.lgk(1)
    P(f"v_add_f32 v{VD}, v{VD}, v{VD+2}", f"v_add_f32 v{VD+1}, v{VD+1}, v{VD+3}")
    P.lgk(0)
    P(f"v_add_f32 v{VD+4}, v{VD+4}, v{VD+6}", f"v_add_f32 v{VD+5}, v{VD+5}, v{VD+7}",
      f"v_add_f32 v{VD}, v{VD}, v{VD+4}", f"v_add_f32 v{VD+1}, v{VD+1}, v{VD+5}", f"v_cvt_pk_bf16_f32 v{VD}, v{VD}, v{VD+1}")
    OB, OD = VA, VA + 16

    def bc(dst, src, n):
        P(f"v_mov_b32_dpp v{dst}, v{src} row_newbcast:{n} {FULL}")

    def gemv_out(nks, breg, areg, dreg, soff, bsrc):
        mm = lambda t, ks: P(f"v_mfma_f32_16x16x32_bf16 {vr(dreg+4*t,4)}, {ar(areg(ks,t),4)}, {vr(breg+4*ks,4)}, {'0' if ks == 0 else vr(dreg+4*t,4)}")
        st = lambda t: P.vm(f"buffer_store_dwordx4 {vr(dreg+4*t,4)}, {vST}, {srd(WS_)}, {soff} offen offset:{64*t} sc1")
        for k in range(4):
            bsrc(k)
        for ks in range(nks):
            if ks + 1 < nks:
                bsrc(4 * ks + 4); bsrc(4 * ks + 5)
            mm(0, ks)
            if ks + 1 < nks:
                bsrc(4 * ks + 6); bsrc(4 * ks + 7)
            mm(1, ks)
        lag = 8 // nks
        nst = 0
        for t in range(2, 7):
            for ks in range(nks):
                mm(t, ks)
            while nst <= t - lag:
                st(nst); nst += 1
        while nst < 7:
            st(nst); nst += 1

    gemv_out(4, OB, wo_reg, OD, f"s{BLK+8}", lambda k: bc(OB + k, VD, k))
    stamp(3)

    if not svc:
        G = VQ
        ld = lambda i: f"buffer_load_dwordx4 {vr(G+4*i,4)}, {vGA}, {srd(WS_)}, s{BLK + (i >> 1)} offen offset:{896*(i & 1)} sc1"
        for i in range(16):
            P.vm(ld(i))
        tr_rows(AREA_B, w2_reg, 0, 28)
        P(f"v_mov_b32 v{T+4}, 0", f"v_mov_b32 v{T+5}, 0", f"s_lshl_b32 {t0}, {sW}, 4", f"s_add_u32 {t0}, {t0}, {STAT}",
          f"v_mov_b32 v{T+7}, {t0}", f"v_and_b32 v{T+3}, 3, {vL}", f"v_lshlrev_b32 v{T+3}, 4, v{T+3}", f"v_add_u32 {vKR0}, {STAT}, v{T+3}",
          f"s_lshl_b32 {t0}, {sW}, 9", f"s_add_u32 {t0}, {t0}, {GU}", f"v_lshl_add_u32 {vKR1}, {vL}, 3, {t0}",
          f"v_lshlrev_b32 {vKG}, 3, {vL}", f"v_add_u32 {vKG}, {GU}, {vKG}",
          f"s_mov_b32 s{BLK+10}, 0x42e00000", f"s_mov_b32 s{BLK+12}, 0", f"s_mov_b32 s{BLK+13}, 0x80000000")
        top, out = P.label("g_top"), P.label("g_out")
        P(f"{top}:", "s_waitcnt vmcnt(0)")
        P.done = P.nvm - 1
        for g in range(4):
            P(f"v_max3_u32 v{T+g}, v{G+16*g}, v{G+16*g+4}, v{G+16*g+8}")
        for g in range(4):
            P(f"v_max_u32 v{T+g}, v{T+g}, v{G+16*g+12}")
        P(f"v_max3_u32 v{T+6}, v{T}, v{T+1}, v{T+2}", f"v_max_u32 v{T+6}, v{T+6}, v{T+3}", f"v_cmp_eq_u32 vcc, -1, v{T+6}")
        slow = P.label("g_slow")
        P(f"s_cbranch_vccnz {slow}", f"{out}:")
        P.cold += [f"{slow}:", f"s_add_u32 {sSPIN}, {sSPIN}, 1", f"s_cmp_gt_u32 {sSPIN}, {c['spin']}", f"s_cbranch_scc1 {out}"]
        for g in range(4):
            sk = P.label("g_skip")
            P.cold += [f"v_cmp_eq_u32 vcc, -1, v{T+g}", f"s_cbranch_vccz {sk}"] + [ld(4*g + i) for i in range(4)] + [f"{sk}:"]
        P.cold += [f"s_branch {top}"]
        stamp(4)
        for step in (8, 4, 2, 1):
            for i in range(step):
                for k in (0, 2):
                    P(f"v_pk_add_f32 {vr(G+4*i+k,2)}, {vr(G+4*i+k,2)}, {vr(G+4*(i+step)+k,2)}")
        a, b = v(G), v(G+1)
        P(f"v_permlane32_swap_b32 v{G}, v{G+2}", f"v_permlane32_swap_b32 v{G+1}, v{G+3}",
          f"v_add_f32 {a}, {a}, v{G+2}", f"v_add_f32 {b}, {b}, v{G+3}")
        rb(P, a, a); rb(P, b, b)
        P(f"v_mul_f32 {a}, {a}, v{cGA}", f"v_mul_f32 {b}, {b}, v{cGA+1}")
        rb(P, a, a); rb(P, b, b)
        P(f"v_add_f32 {a}, {a}, v{cX}", f"v_add_f32 {b}, {b}, v{cX+1}")
        rb(P, a, a); rb(P, b, b)
        s1, s2, pv_ = v(T+4), v(T+5), v(T+6)
        d0, d1 = v(G+2), v(G+3)
        P(f"v_readfirstlane_b32 {t0}, {a}", f"s_mov_b64 exec, {mT}",
          f"v_subrev_f32 {d0}, {t0}, {a}", f"v_subrev_f32 {d1}, {t0}, {b}", f"v_add_f32 {s1}, {d0}, {d1}",
          f"v_mul_f32 {s2}, {d0}, {d0}", f"v_fmac_f32 {s2}, {d1}, {d1}", "s_mov_b64 exec, -1", f"v_mov_b32 {pv_}, {t0}")
        for ctl in ("row_ror:8 " + FULL, "row_ror:4 " + FULL, "row_ror:2 " + FULL, "row_ror:1 " + FULL,
                    "row_bcast:15 row_mask:0xa bank_mask:0xf", "row_bcast:31 row_mask:0xc bank_mask:0xf"):
            P(f"v_add_f32_dpp {s1}, {s1}, {s1} {ctl}", f"v_add_f32_dpp {s2}, {s2}, {s2} {ctl}")
        P(f"s_mov_b64 exec, s[{BLK+12}:{BLK+13}]", f"ds_write_b96 v{T+7}, {vr(T+4,3)}", "s_mov_b64 exec, -1")
        P.lgk()
        P("s_barrier")
        P(f"ds_read_b96 {vr(T+4,3)}, {vKR0}")
        P.lgk()
        mean, var, dl, rs = v(T), v(T+1), v(T+2), v(T+3)
        n112 = f"s{BLK+10}"
        P(f"v_fma_f32 {mean}, {pv_}, {n112}, {s1}",
          f"v_add_f32_dpp {mean}, {mean}, {mean} quad_perm:[1,0,3,2] {FULL}", f"v_add_f32_dpp {mean}, {mean}, {mean} quad_perm:[2,3,0,1] {FULL}",
          f"v_mul_f32 {mean}, {RN:#x}, {mean}", f"v_add_f32 {s1}, {s1}, {s1}", f"v_sub_f32 {dl}, {mean}, {pv_}",
          f"v_fma_f32 {var}, {dl}, {n112}, -{s1}", f"v_fma_f32 {var}, {var}, {dl}, {s2}")
        rb(P, mean, mean)
        P(f"v_sub_f32 {d0}, {a}, {mean}",
          f"v_add_f32_dpp {var}, {var}, {var} quad_perm:[1,0,3,2] {FULL}",
          f"v_sub_f32 {d1}, {b}, {mean}")
        rb(P, d0, d0)
        P(f"v_add_f32_dpp {var}, {var}, {var} quad_perm:[2,3,0,1] {FULL}")
        rb(P, d1, d1)
        P(f"v_mul_f32 {var}, {RN:#x}, {var}", f"v_max_f32 {var}, 0, {var}")
        rb(P, var, var)
        P(f"v_add_f32 {var}, {EPS:#x}, {var}"); rb(P, var, var)
        P(f"v_sqrt_f32 {var}, {var}"); rb(P, var, var)
        P(f"v_rcp_f32 {rs}, {var}", f"v_mul_f32 {d0}, {d0}, {rs}", f"v_mul_f32 {d1}, {d1}, {rs}")
        rb(P, d0, d0); rb(P, d1, d1)
        P(f"v_mul_f32 {d0}, {d0}, v{cCB}", f"v_mul_f32 {d1}, {d1}, v{cCB+1}")
        rb(P, d0, d0); rb(P, d1, d1)
        P(f"v_add_f32 {d0}, {d0}, v{cSB}", f"v_add_f32 {d1}, {d1}, v{cSB+1}", f"v_cvt_pk_bf16_f32 v{T}, {d0}, {d1}")
        HB, GD = VA, VQ
        for k in range(4):
            bc(HB + k, T, k)
        nb = 4
        for ks in range(4):
            for mt in range(8):
                dd = vr(GD + 4 * mt, 4)
                if ks < 3:
                    P(f"v_mfma_f32_16x16x32_bf16 {dd}, {vr(HB+4*ks,4)}, {vr(w13_reg(ks, mt >> 2, mt & 3),4)}, {'0' if ks == 0 else dd}")
                else:
                    P(f"v_mfma_f32_16x16x16_bf16 {dd}, {vr(HB+12,2)}, {vr(w13_reg(3, mt >> 2, mt & 3),2)}, {dd}")
                if nb < 14:
                    bc(HB + nb, T, nb); nb += 1
        for m in range(2):
            for t in range(1, 4):
                P(f"v_mov_b32_dpp v{GD+16*m}, v{GD+16*m+4*t} quad_perm:[0,1,2,3] row_mask:{1 << t:#x} bank_mask:0xf")
        P(f"ds_write2_b32 {vKR1}, v{GD}, v{GD+16} offset0:0 offset1:1")
        P.lgk()
        P("s_barrier")
        P(f"ds_read2st64_b64 {vr(GD,4)}, {vKG} offset0:0 offset1:1", f"ds_read2st64_b64 {vr(GD+4,4)}, {vKG} offset0:2 offset1:3")
        P.lgk(1)
        P(f"v_add_f32 v{GD}, v{GD}, v{GD+2}", f"v_add_f32 v{GD+1}, v{GD+1}, v{GD+3}")
        P.lgk(0)
        g_, u_, e_ = v(GD), v(GD+1), v(GD+2)
        P(f"v_add_f32 v{GD+4}, v{GD+4}, v{GD+6}", f"v_add_f32 v{GD+5}, v{GD+5}, v{GD+7}",
          f"v_add_f32 {g_}, {g_}, v{GD+4}", f"v_add_f32 {u_}, {u_}, v{GD+5}")
        rb(P, g_, g_)
        P(f"v_mul_f32 {e_}, {LOG2E | 0x80000000:#x}, {g_}", f"v_exp_f32 {e_}, {e_}")
        rb(P, u_, u_)
        P(f"v_add_f32 {e_}, 1.0, {e_}", f"v_rcp_f32 {e_}, {e_}", f"v_mul_f32 {g_}, {g_}, {e_}")
        rb(P, g_, g_)
        P(f"v_mul_f32 {g_}, {g_}, {u_}", f"v_mov_b32_dpp {u_}, {g_} quad_perm:[1,0,3,2] {FULL}", f"v_cvt_pk_bf16_f32 {g_}, {g_}, {u_}")
        gemv_out(2, VA, w2_reg, VS, f"s{BLK+9}", lambda k: bc(VA + k, GD, 2 * k))
        stamp(5)
    else:
        G = VQ

        def gather(buf, name, last):
            ld = [f"s_mov_b32 {t0}, {buf}", f"buffer_load_dwordx4 {vr(G,4)}, {vGA}, {srd(WS_)}, {t0} offen sc1",
                  f"buffer_load_dwordx4 {vr(G+4,4)}, {vGA}, {srd(WS_)}, {t0} offen offset:3584 sc1",
                  f"s_mov_b32 {t1}, {buf + 7168}", f"buffer_load_dwordx4 {vr(G+8,4)}, {vGA}, {srd(WS_)}, {t1} offen sc1",
                  f"buffer_load_dwordx4 {vr(G+12,4)}, {last}, {srd(WS_)}, {t1} offen offset:3584 sc1"]
            iss, ver = poll(P, c, ld, [f"v_max3_u32 v{T}, v{G}, v{G+4}, v{G+8}", f"v_max_u32 v{T}, v{T}, v{G+12}",
                                       f"v_cmp_eq_u32 vcc, -1, v{T}"], name)
            iss(); ver()
            for step in (2, 1):
                for i in range(step):
                    for k in (0, 2):
                        P(f"v_pk_add_f32 {vr(G+4*i+k,2)}, {vr(G+4*i+k,2)}, {vr(G+4*(i+step)+k,2)}")
            P(f"v_permlane32_swap_b32 v{G}, v{G+2}", f"v_permlane32_swap_b32 v{G+1}, v{G+3}",
              f"v_add_f32 v{G}, v{G}, v{G+2}", f"v_add_f32 v{G+1}, v{G+1}, v{G+3}",
              f"v_permlane16_swap_b32 v{G}, v{G+1}", f"v_add_f32 v{G}, v{G}, v{G+1}",
              f"v_add_f32_dpp v{G}, v{G}, v{G} row_ror:8 {FULL}")
            rb(P, v(G), v(G))
        gather(PBUF, "p", vGA)
        P(f"v_mul_f32 v{G}, v{G}, v{cGA}"); rb(P, v(G), v(G))
        P(f"v_add_f32 v{cX}, v{G}, v{cX}"); rb(P, v(cX), v(cX))
        P(f"s_and_b64 {mT}, {mT}, {mN8}")
        stamp(4)
        gather(FBUF, "f", vWG)
        P(f"v_mul_f32 v{G}, v{G}, v{cCB}"); rb(P, v(G), v(G))
        P(f"v_add_f32 v{G}, v{G}, v{cX}", f"v_cvt_pk_bf16_f32 v{G}, v{G}, v{G}", f"s_mov_b64 exec, {mT}")
        P.vm(f"global_store_short v{cSB}, v{G}, {sp(pOUT)}")
        P("s_mov_b64 exec, -1")
        stamp(5)
    if c["padto"]:
        lp = P.label("pad")
        P(f"{lp}:", "s_memrealtime s[74:75]", "s_waitcnt lgkmcnt(0)", "s_sub_u32 s74, s74, s0", f"s_cmp_lt_u32 s74, {c['padto']}", f"s_cbranch_scc1 {lp}")
    if c["stamps"]:
        P("s_waitcnt vmcnt(0)")
        stamp(6)
        P(f"s_getreg_b32 {t1}, hwreg(HW_REG_XCC_ID, 0, 4)", "v_accvgpr_write_b32 a240, s0", f"v_accvgpr_write_b32 a247, {t1}",
          f"v_accvgpr_write_b32 a248, {sSPIN}", *[f"v_accvgpr_write_b32 a{249+i}, s{r}" for i, r in enumerate(MIDS)],
          f"s_lshl_b32 {t0}, s2, 2", f"s_add_u32 {t0}, {t0}, {sW}", f"s_lshl_b32 {t0}, {t0}, 6", f"s_add_u32 {t0}, {t0}, {STAMP}",
          f"v_mov_b32 v{T}, {t0}", "s_mov_b64 exec, 1", "s_nop 1",
          f"global_store_dwordx4 v{T}, a[240:243], {sp(pWS)}", f"global_store_dwordx4 v{T}, a[244:247], {sp(pWS)} offset:16",
          f"global_store_dwordx4 v{T}, a[248:251], {sp(pWS)} offset:32", f"global_store_dwordx4 v{T}, a[252:255], {sp(pWS)} offset:48")
    P("s_endpgm")


if __name__ == "__main__":
    kw = {}
    for a in sys.argv[2:]:
        k, val = a.split("=", 1)
        kw[k] = eval(val)
    open(sys.argv[1], "w").write(build(**kw))
```

```python
import sys, os
sys.path.insert(0, os.path.dirname(os.path.abspath(__file__)))
from asmlib import Prog, pad_hazards

KN = "adaLN_cond__sliding_block_cached__glu_gated_swiglu__decode_kernel"

QBUF, OBUF, MLBUF, HBUF, EPOCH, MODBUF = 0x0, 0x80000, 0xE0000, 0xE8000, 0xEF800, 0xF0000
PBUF, FBUF, WSEND = 0x100000, 0x180000, 0x200000
STAMP = 0x400000
AREA_A, AREA_B, SLOT0, SCR = 0, 57344, 114688, 148480
REG_W = 14336
WQOFF = 8448
HQ, QL, OPART, ORED, STAT, GU = SCR, SCR + 2048, SCR + 3072, SCR + 9216, SCR + 11264, SCR + 11520
LDS_BYTES = SCR + 13568
OOB = 0x40000000
LOG2E = 0x3FB8AA3B
CSC = 0x3DB8AA3B
EPS = 0x3727C5AC
RN = 0x3B124925

sW, sHKV, sS, sB, sJ = "s3", "s4", "s5", "s6", "s7"
K_, V_, WS_, WA_, WB_, WO_, W2_, WQ_ = 8, 12, 16, 20, 24, 28, 32, 36
BLK = 40
sSL0, sSL1, sWST = "s56", "s57", "s58"
t0, t1, t2, t3, t4 = "s59", "s60", "s61", "s62", "s63"
pX, pK, pV, pWQ, pWO, pW1, pW3, pW2, pC, pWM, pOUT, pDBG, pWS = 64, 66, 68, 70, 72, 76, 78, 80, 82, 84, 86, 88, 90
sSPIN, sG = "s92", "s93"
sT, sTL, sTH = "s88", "s89", "s1"
mN8, mH, mPAR, mT = "s[94:95]", "s[96:97]", "s[98:99]", "s[100:101]"
srd = lambda r: f"s[{r}:{r+3}]"
sp = lambda r: f"s[{r}:{r+1}]"

vL, vLIN, vKG, vKR0, vKR1, vV, vVB, vWG, vWR, vWOR, vM0, vM1, vOL, vST, vGA, vOR = ["v%d" % i for i in range(16)]
cGA, cX, cCB, cSB = 16, 18, 20, 22
T = 24
VQ, VS, VD, VA, VACC, VW = 32, 64, 80, 96, 128, 144
v = lambda i: f"v{i}"
vr = lambda i, n: f"v[{i}:{i+n-1}]"
ar = lambda i, n: f"a[{i}:{i+n-1}]"
FULL = "row_mask:0xf bank_mask:0xf"


DEF = dict(D=6, DV=6, DI=8, DIEND=40, rot=(1, 1, 2), H0=30, Q0=48, HI=20, QI=44, M0=78, G0=100, C0=110, X1=90,
           W13=(8, 46), LU=(66, 108), W2A=(66, 112), w2late=0, spin=1 << 20, flush=64, stamps=False, abl=(), padto=0,
           pref=True, PF2=100, kflag="nt", wflag="nt", loc="", mid=(20, 40, 56, 72, 88, 108, 122), midI=None)
MIDS = (82, 84, 66, 68, 76, 78, 70)


def build(**kw):
    c = dict(DEF)
    c.update(kw)
    head = Prog()
    entry(head, c)
    N, I = Prog(), Prog()
    I.uid = 1000
    program(N, c, False)
    program(I, c, True)
    lines = head.L + N.L + N.cold + [".p2align 6", "L_progI:"] + I.L + I.cold + ["L_end:", "s_endpgm"]
    abl = c["abl"]
    out = []
    for l in lines:
        tag = l.split(";@")[1].strip() if ";@" in l else None
        if tag and tag in abl:
            out += ["s_mov_b64 exec, 0", l, "s_mov_b64 exec, -1"]
        else:
            out.append(l)
    lines = [l.replace(";@", "; ") for l in out]
    if "bar" in abl:
        lines = [l for l in lines if l != "s_barrier"]
    if "ds" in abl:
        lines = [l for l in lines if not l.startswith("ds_")]
    if "mfma" in abl:
        lines = [l for l in lines if not l.startswith("v_mfma")]
    lines = pad_hazards(lines)
    body = "\n".join(("" if l.endswith(":") else "    ") + l for l in lines)
    return HEADER + body + "\n" + FOOTER


HEADER = f"""; Fused decode step: adaLN modulation -> q projection -> sliding-window GQA attention -> wo -> adaLN -> SwiGLU FFN.
; One persistent workgroup per CU: wg = (b, s, hkv); 512 keys of one (batch, kv head) each.
; Kernarg: 0 x, 8 k_cache, 16 v_cache, 24 wq, 32 wo, 40 B_x (unused), 48 w1, 56 w3, 64 w2, 72 c, 80 w_mod, 88 out, 96 debug, 104 ws
; @launch grid=(256,1,1) block=(256,1,1) lds={LDS_BYTES}
.amdgcn_target "amdgcn-amd-amdhsa--gfx950"
.text
.globl {KN}
.p2align 8
.type {KN},@function
{KN}:
"""
FOOTER = f"""L_codeend:
.section .rodata,"a"
.p2align 6
.amdhsa_kernel {KN}
  .amdhsa_next_free_vgpr 512
  .amdhsa_next_free_sgpr 102
  .amdhsa_accum_offset 256
  .amdhsa_group_segment_fixed_size 0
  .amdhsa_kernarg_size 112
  .amdhsa_user_sgpr_count 2
  .amdhsa_user_sgpr_kernarg_segment_ptr 1
  .amdhsa_system_sgpr_workgroup_id_x 1
  .amdhsa_float_denorm_mode_32 3
.end_amdhsa_kernel
"""


def mk_srd(P, r, ptr, off, nrec):
    if off is None:
        P(f"s_mov_b32 s{r}, s{ptr}", f"s_mov_b32 s{r+1}, s{ptr+1}")
    else:
        P(f"s_add_u32 s{r}, s{ptr}, {off}", f"s_addc_u32 s{r+1}, s{ptr+1}, 0")
    P(f"s_mov_b32 s{r+2}, {nrec}", f"s_mov_b32 s{r+3}, 0x20000")


def entry(P, c):
    P("s_cmp_ge_u32 s2, 256", "s_cbranch_scc1 L_end",
      "s_load_dwordx16 s[64:79], s[0:1], 0", "s_load_dwordx8 s[80:87], s[0:1], 64", "s_load_dwordx4 s[88:91], s[0:1], 96")
    if c["stamps"] or c["padto"]:
        P("s_memrealtime s[0:1]")
    P(f"s_and_b32 {sJ}, s2, 31", f"s_lshr_b32 {t2}, s2, 3", f"s_and_b32 {t1}, {t2}, 4", f"s_xor_b32 {t1}, {t1}, {sJ}",
      f"s_cmp_ge_u32 {sJ}, 24", f"s_cselect_b32 {sJ}, {t1}, {sJ}", f"s_cmp_ge_u32 {sJ}, 28", "s_cbranch_scc1 L_progI")


def ids(P):
    P("v_lshrrev_b32 v1, 6, v0", "v_and_b32 v0, 63, v0", f"v_readfirstlane_b32 {sW}, v1",
      f"s_and_b32 {sHKV}, s2, 7", f"s_and_b32 {sS}, {t2}, 3", f"s_lshr_b32 {sB}, s2, 5", f"s_mov_b32 {sSPIN}, 0",
      f"v_lshlrev_b32 {vLIN}, 4, {vL}",
      f"s_mul_i32 {sSL1}, {sW}, {REG_W}", f"s_add_u32 {sWST}, {sSL1}, {AREA_B}")


def kv_setup(P, c, wait):
    a, b_, g_ = c["rot"]
    term = lambda d, r, m: [f"s_mul_i32 {d}, {r}, {m}"] if m != 1 else [f"s_mov_b32 {d}, {r}"]
    P(f"v_lshrrev_b32 {vKG}, 5, {vL}", f"v_xor_b32 {vKG}, {vKG}, {vL}", f"v_lshlrev_b32 {vKG}, 4, {vKG}",
      f"s_lshl3_add_u32 {t0}, {sB}, {sHKV}", f"s_lshl4_add_u32 {t0}, {t0}, {sS}", f"s_lshl2_add_u32 {t0}, {t0}, {sW}",
      f"s_add_u32 {t0}, {t0}, 48", f"s_lshl_b32 {t0}, {t0}, 16",
      f"s_lshr_b32 {t2}, s2, 3", *term(t2, t2, g_), *term(t1, sHKV, a), f"s_add_u32 {t1}, {t1}, {t2}",
      *term(t2, sW, b_), f"s_add_u32 {t1}, {t1}, {t2}", f"s_and_b32 {t1}, {t1}, 15", f"s_lshl_b32 s{BLK}, {t1}, 12",
      f"s_mul_i32 {sSL0}, {sW}, 8448", f"s_add_u32 {sSL0}, {sSL0}, {SLOT0}",
      f"s_mov_b32 s{K_+2}, 0x10000", f"s_mov_b32 s{K_+3}, 0x20000", f"s_mov_b32 s{V_+2}, 0x10000", f"s_mov_b32 s{V_+3}, 0x20000")
    if wait:
        P("s_waitcnt lgkmcnt(0)")
    P(f"s_add_u32 s{K_}, s{pK}, {t0}", f"s_addc_u32 s{K_+1}, s{pK+1}, 0", f"s_add_u32 s{V_}, s{pV}, {t0}", f"s_addc_u32 s{V_+1}, s{pV+1}, 0")


def rb(P, d, s):
    P(f"v_cvt_pk_bf16_f32 {d}, 0, {s}")


def spin_step(P, c, giveup):
    nf = P.label("nowb")
    P(f"s_add_u32 {sSPIN}, {sSPIN}, 1", f"s_cmp_gt_u32 {sSPIN}, {c['spin']}", f"s_cbranch_scc1 {giveup}",
      f"s_and_b32 {t4}, {sSPIN}, {c['flush'] - 1}", f"s_cbranch_scc1 {nf}", "s_waitcnt vmcnt(0)", "buffer_wbl2 sc1", f"{nf}:")


def tag2(P, dst, k8):
    P(f"v_lshrrev_b32 v{dst+3}, {k8}, {sT}")
    for d in range(4):
        P(f"v_bfe_u32 v{dst+d}, v{dst+3}, {2*d}, 2")


def poll(P, c, loads, check, name, pre=()):
    st = {}
    loads = [l + f" ;@ld_{name}" if l.startswith(("buffer_", "global_")) else l for l in loads]

    def issue():
        P(*pre)
        for l in loads:
            if l.startswith(("buffer_", "global_")):
                st["op"] = P.vm(l)
            else:
                P(l)

    def verify():
        top, ok = P.label(name + "_chk"), P.label(name + "_ok")
        P.wait(st["op"])
        P(f"{top}:", *check)
        P(f"s_cbranch_vccz {ok}")
        spin_step(P, c, ok)
        P(*loads, "s_waitcnt vmcnt(0)", f"s_branch {top}", f"{ok}:")
    return issue, verify


def program(P, c, svc):
    D, DV = c["D"], c["DV"]
    ev = {}
    stamp_n = [0]

    def at(n, f):
        ev.setdefault(n, []).append(f)

    def stamp(idx):
        if c["stamps"]:
            P("s_memrealtime s[74:75]", "s_waitcnt lgkmcnt(0)", f"v_accvgpr_write_b32 a{240+idx}, s74")

    first = -14 if svc else 0
    depth = lambda n: (c["DI"] if (svc and n < c["DIEND"]) else (D if n < 64 else DV))
    sop = {}

    def done_slot(n):
        m = n + 1
        while m - depth(m) < n:
            m += 1
        return m

    def setup_blocks():
        for t in range(1, 16):
            P(f"s_add_u32 s{BLK+t}, s{BLK+t-1}, 0x1000", f"s_and_b32 s{BLK+t}, s{BLK+t}, 0xffff")

    def ws_srd():
        mk_srd(P, WS_, pWS, None, 0 if "ws" in c["abl"] else WSEND)
        P(f"s_load_dword {sT}, {sp(pWS)}, {EPOCH}")

    def mk_tag():
        P.lgk()
        P(f"s_and_b32 {t0}, {sT}, 0x7f7f7f7f", f"s_add_u32 {t0}, {t0}, 0x01010101", f"s_and_b32 {sT}, {sT}, 0x80808080",
          f"s_xor_b32 {sT}, {sT}, {t0}", f"s_and_b32 {sTL}, {sT}, 0xffff", f"s_lshr_b32 {sTH}, {sT}, 16")

    def setup_common():
        P(f"s_mov_b32 s94, 0x00ff00ff", "s_mov_b32 s95, 0x00ff00ff", "s_mov_b32 s96, 0xf0f0f0f0", "s_mov_b32 s97, 0xf0f0f0f0",
          "s_mov_b32 s98, 0xff00ff00", "s_mov_b32 s99, 0xff00ff00")
        x0, x1, x2 = v(T), v(T+1), v(T+2)
        P(f"v_bfe_u32 {x0}, {vL}, 1, 1", f"v_bfe_u32 {x1}, {vL}, 2, 2", f"v_lshl_add_u32 {x0}, {x0}, 2, {x1}",
          f"v_mul_u32_u24 {x0}, 1056, {x0}", f"v_and_b32 {x1}, 1, {vL}", f"v_lshl_add_u32 {x0}, {x1}, 9, {x0}",
          f"v_lshrrev_b32 {x2}, 4, {vL}", f"v_xor_b32 {x2}, {x2}, {x1}", f"v_lshl_add_u32 {x0}, {x2}, 4, {x0}",
          f"v_add_u32 {vKR0}, {sSL0}, {x0}", f"v_add_u32 {vKR1}, {sSL1}, {x0}")
        P(f"v_lshrrev_b32 {x0}, 3, {vL}", f"v_and_b32 {x1}, 7, {vL}", f"v_lshlrev_b32 {x1}, 4, {x1}",
          f"v_lshl_add_u32 {vVB}, {x0}, 9, {x1}")
        P(f"v_and_b32 {x0}, 1, {vL}", f"v_lshlrev_b32 {x0}, 4, {x0}", f"v_mov_b32 {x1}, 0xffff", f"v_lshlrev_b32 {x0}, {x0}, {x1}",
          f"v_and_b32 {x1}, 2, {vL}", f"v_cmp_eq_u32 vcc, 0, {x1}", f"v_cndmask_b32 {vM0}, 0, {x0}, vcc",
          f"v_cndmask_b32 {vM1}, {x0}, 0, vcc")
        P(f"v_bfe_u32 {x0}, {vL}, 4, 1", f"v_and_b32 {x1}, 7, {vL}", f"v_lshlrev_b32 {x1}, 5, {x1}",
          f"v_lshl_add_u32 {x0}, {x0}, 8, {x1}", f"v_lshrrev_b32 {x1}, 5, {vL}", f"v_lshl_add_u32 {vOL}, {x1}, 4, {x0}")

    def setup_tail():
        x0, x1, x2 = v(T), v(T+1), v(T+2)
        P(f"v_lshrrev_b32 {x0}, 4, {vL}", f"v_bfe_u32 {x1}, {vL}, 2, 2", f"v_lshl_add_u32 {x0}, {x0}, 4, {x1}",
          f"v_mul_u32_u24 {x0}, 896, {x0}", f"v_and_b32 {x1}, 3, {vL}", f"v_lshl_add_u32 {x0}, {x1}, 3, {x0}",
          f"s_mul_i32 {t0}, {sW}, 224", f"v_add_u32 {vWOR}, {t0}, {x0}")
        P(f"v_bfe_u32 {x0}, {vL}, 3, 1", f"v_lshrrev_b32 {x1}, 4, {vL}", f"v_lshlrev_b32 {x1}, 6, {x1}",
          f"v_lshl_add_u32 {x0}, {x0}, 8, {x1}", f"v_and_b32 {x1}, 7, {vL}", f"v_lshl_add_u32 {x0}, {x1}, 3, {x0}",
          f"v_add_u32 {vOR}, {ORED}, {x0}")
        P(f"s_lshl2_add_u32 {t0}, {sB}, {sW}", f"s_lshl_b32 {t0}, {t0}, 14", f"v_and_b32 {x0}, 48, {vL}", f"v_and_b32 {x1}, 7, {vL}",
          f"v_lshlrev_b32 {x1}, 4, {x1}", f"v_lshl_add_u32 {x0}, {x0}, 3, {x1}", f"v_add_u32 {vST}, {t0}, {x0}")
        P(f"s_lshl_b32 {t0}, {sHKV}, 9", f"s_lshl_b32 {t1}, {sS}, 6", f"s_add_u32 {t0}, {t0}, {t1}",
          f"s_mul_i32 {t0}, {t0}, 896", f"s_add_u32 {t0}, {t0}, {sSL1}")
        mk_srd(P, WO_, pWO, t0, 0 if "wo" in c["abl"] else 256 * 896 + REG_W)

    def prefetch_code():
        if not c["pref"]:
            return
        lab = P.label("pc")
        P(f"s_getpc_b64 {mT}", f"{lab}:",
          f"s_sub_u32 s100, s100, {lab}-{KN}", "s_subb_u32 s101, s101, 0",
          f"s_mul_i32 {t0}, {sB}, 3", f"s_add_u32 {t0}, {t0}, {sS}", f"s_lshl2_add_u32 {t0}, {t0}, {sW}", f"s_mul_i32 {t0}, {t0}, 384",
          f"v_min_u32 v{T}, 2, {vL}", f"v_lshl_add_u32 v{T}, v{T}, 7, {t0}", f"v_min_u32 v{T}, L_codeend-{KN}-4, v{T}",
          f"v_mov_b32 v{T+1}, s101", f"v_add_co_u32 v{T}, vcc, s100, v{T}", "s_nop 1", f"v_addc_co_u32 v{T+1}, vcc, 0, v{T+1}, vcc")
        P.vm(f"global_load_dword {vGA}, {vr(T,2)}, off")

    wq = {}

    def wq_setup():
        P(f"s_mul_i32 {t0}, {sS}, {112*8192}", f"s_lshl_b32 {t1}, {sHKV}, 10", f"s_add_u32 {t0}, {t0}, {t1}",
          f"s_lshl_b32 {t1}, {sB}, 7", f"s_add_u32 {t0}, {t0}, {t1}")
        mk_srd(P, WQ_, pWQ, t0, 0 if "wq" in c["abl"] else 111 * 8192 + 128)
        P(f"v_lshrrev_b32 v{T}, 3, {vL}", f"v_and_b32 v{T+1}, 7, {vL}", f"v_lshlrev_b32 v{T+1}, 4, v{T+1}",
          f"v_lshl_add_u32 v{T}, v{T}, 13, v{T+1}", f"s_lshl_b32 {t0}, {sW}, 18", f"v_add_u32 {vV}, {t0}, v{T}")

    def wq_load(i):
        def f():
            P(f"s_add_u32 {t0}, {sSL1}, {WQOFF + 1024*i}", f"s_mov_b32 m0, {t0}")
            wq["op"] = P.vm(f"buffer_load_dwordx4 {vV}, {srd(WQ_)}, 0 offen {c['wflag']} lds")
            P(f"v_add_u32 {vV}, 0x10000, {vV}")
        return f

    half = lambda k: sTH if k & 1 else sTL
    h_issue, h_verify = poll(P, c, [f"buffer_load_dwordx4 {vr(VD,4)}, v{VD+8}, {srd(WS_)}, 0 offen sc1",
                                    f"buffer_load_dwordx4 {vr(VD+4,4)}, v{VD+9}, {srd(WS_)}, 0 offen sc1"],
                             [f"v_xor_b32 v{VD+k}, {half(k)}, v{VD+k}" for k in range(8)] +
                             [f"v_or3_b32 v{VD+11}, v{VD}, v{VD+1}, v{VD+2}", f"v_or3_b32 v{VD+11}, v{VD+11}, v{VD+3}, v{VD+4}",
                              f"v_or3_b32 v{VD+11}, v{VD+11}, v{VD+5}, v{VD+6}", f"v_or_b32 v{VD+11}, v{VD+11}, v{VD+7}",
                              f"v_and_b32 v{VD+11}, 0xffff, v{VD+11}", f"v_cmp_ne_u32 vcc, 0, v{VD+11}"], "h",
                             pre=[f"s_lshl2_add_u32 {t0}, {sS}, {sW}", f"s_mul_i32 {t0}, {t0}, 896", f"s_add_u32 {t0}, {t0}, {HBUF}",
                                  f"v_min_u32 v{VD+10}, 55, {vL}", f"v_lshl_add_u32 v{VD+8}, v{VD+10}, 4, {t0}", f"v_add_u32 v{VD+9}, 14336, v{VD+8}",
                                  f"s_mul_i32 {t1}, {sW}, 448", f"s_add_u32 {t1}, {t1}, {HQ}", f"v_lshl_add_u32 v{VD+10}, v{VD+10}, 3, {t1}"])

    def q_unit():
        h_verify()
        for k in range(4):
            P(f"v_add_f32 v{VD+k}, v{VD+k}, v{VD+4+k}")
        P(f"v_cvt_pk_bf16_f32 v{VD}, v{VD}, v{VD+1}", f"v_cvt_pk_bf16_f32 v{VD+1}, v{VD+2}, v{VD+3}", f"ds_write_b64 v{VD+10}, {vr(VD,2)}")
        x0, x1, x2 = v(T), v(T+1), v(T+2)
        P(f"v_lshrrev_b32 {x0}, 2, {vL}", f"v_and_b32 {x1}, 3, {vL}", f"v_lshlrev_b32 {x1}, 3, {x1}",
          f"v_lshl_add_u32 {x0}, {x0}, 7, {x1}", f"s_lshl_b32 {t0}, {sW}, 5", f"v_add_u32 {x0}, {t0}, {x0}",
          f"v_lshrrev_b32 {x1}, 4, {vL}", f"v_and_b32 {x2}, 7, {vL}", f"v_lshlrev_b32 {x2}, 3, {x2}",
          f"v_lshl_add_u32 {x1}, {x1}, 6, {x2}", f"v_add_u32 {x1}, {HQ}, {x1}")
        P.wait(wq["op"])
        P.lgk()
        P("s_barrier")
        for i in range(7):
            P(f"ds_read_b64_tr_b16 {vr(VA+2*i,2)}, {x0} offset:{REG_W*(i>>1) + WQOFF + 2048*(i&1)}",
              f"ds_read_b64 {vr(VA+16+2*i,2)}, {x1} offset:{256*i}")
        P(f"s_lshl_b32 {t0}, {sHKV}, 16", f"s_lshl_b32 {t1}, {sS}, 11", f"s_add_u32 {t0}, {t0}, {t1}",
          f"s_lshl2_add_u32 {t1}, {sB}, {sW}", f"s_lshl_b32 {t1}, {t1}, 6", f"s_add_u32 {t0}, {t0}, {t1}", f"s_add_u32 {t1}, {t0}, 0x2000",
          f"v_and_b32 {x2}, 16, {vL}", f"v_lshlrev_b32 {x2}, 11, {x2}", f"v_and_b32 v{T+3}, 32, {vL}", f"v_lshl_add_u32 {x2}, v{T+3}, 9, {x2}",
          f"v_and_b32 v{T+3}, 15, {vL}", f"v_lshl_add_u32 {x2}, v{T+3}, 2, {x2}", f"v_lshlrev_b32 v{T+3}, 1, v{T+3}",
          f"v_lshrrev_b32 v{T+3}, v{T+3}, {sT}", f"v_cmp_lt_u32 vcc, 31, {vL}")
        P.lgk()
        for ks in range(3):
            P(f"v_mfma_f32_16x16x32_bf16 {vr(VD,4)}, {vr(VA+16+4*ks,4)}, {vr(VA+4*ks,4)}, {'0' if ks == 0 else vr(VD,4)}")
        P(f"v_mfma_f32_16x16x16_bf16 {vr(VD,4)}, {vr(VA+28,2)}, {vr(VA+12,2)}, {vr(VD,4)}")
        for k in range(2):
            P(f"v_cndmask_b32 v{VD+k}, v{VD+k}, v{VD+2+k}, vcc", f"v_bfi_b32 v{VD+k}, 3, v{T+3}, v{VD+k}")
        for k in range(2):
            P.vm(f"buffer_store_dword v{VD+k}, {x2}, {srd(WS_)}, {t1 if k else t0} offen offset:{QBUF} {c['loc']} ;@st_q")

    q_issue, q_verify = poll(P, c, [f"buffer_load_dwordx4 {vr(VD+4,4)}, v{VD+12}, {srd(WS_)}, 0 offen sc1",
                                    f"buffer_load_dwordx4 {vr(VD+8,4)}, v{VD+13}, {srd(WS_)}, 0 offen sc1"],
                             [f"v_xor_b32 v{VD+4+k}, v{T+4+(k&3)}, v{VD+4+k}" for k in range(8)] +
                             [f"v_or3_b32 v{VD+14}, v{VD+4}, v{VD+5}, v{VD+6}", f"v_or3_b32 v{VD+14}, v{VD+14}, v{VD+7}, v{VD+8}",
                              f"v_or3_b32 v{VD+14}, v{VD+14}, v{VD+9}, v{VD+10}", f"v_or_b32 v{VD+14}, v{VD+14}, v{VD+11}",
                              f"v_and_b32 v{VD+14}, 3, v{VD+14}", f"v_cmp_ne_u32 vcc, 0, v{VD+14}"], "q",
                             pre=[f"s_lshl_b32 {t0}, {sHKV}, 16", f"s_lshl_b32 {t1}, {sB}, 13", f"s_add_u32 {t0}, {t0}, {t1}",
                                  f"s_lshl_b32 {t1}, {sW}, 9", f"s_add_u32 {t0}, {t0}, {t1}",
                                  f"v_lshrrev_b32 v{VD+12}, 5, {vL}", f"v_lshlrev_b32 v{VD+12}, 11, v{VD+12}",
                                  f"v_and_b32 v{VD+13}, 31, {vL}", f"v_lshlrev_b32 v{VD+13}, 4, v{VD+13}",
                                  f"v_add3_u32 v{VD+12}, v{VD+12}, v{VD+13}, {t0}", f"v_add_u32 v{VD+13}, 0x1000, v{VD+12}"])

    def q_gather():
        P(f"v_and_b32 v{T+3}, 3, {vL}", f"v_lshlrev_b32 v{T+3}, 3, v{T+3}")
        tag2(P, T + 4, v(T+3))
        q_verify()
        a = VD + 4
        for i in range(4):
            P(f"v_add_f32 v{a+i}, v{a+i}, v{a+4+i}")
        x0, x1 = v(T), v(T+1)
        P(f"v_and_b32 {x0}, 31, {vL}", f"v_lshrrev_b32 {x1}, 5, {vL}", f"v_lshlrev_b32 {x1}, 2, {x1}",
          f"v_lshl_add_u32 {x0}, {x0}, 3, {x1}", f"s_lshl_b32 {t0}, {sW}, 8", f"s_add_u32 {t0}, {t0}, {QL}", f"v_add_u32 {x0}, {t0}, {x0}",
          f"v_permlane32_swap_b32 v{a}, v{a+2}", f"v_permlane32_swap_b32 v{a+1}, v{a+3}",
          f"v_add_f32 v{a}, v{a}, v{a+2}", f"v_add_f32 v{a+1}, v{a+1}, v{a+3}", f"v_cvt_pk_bf16_f32 v{a}, v{a}, v{a+1}",
          f"ds_write_b32 {x0}, v{a}",
          f"v_bfe_u32 {x0}, {vL}, 2, 1", f"v_and_b32 {x1}, 48, {vL}", f"v_lshl_add_u32 {x1}, {x0}, 9, {x1}", f"v_add_u32 {x1}, {QL}, {x1}")
        P.lgk()
        P("s_barrier")
        for ks in range(8):
            P(f"ds_read_b128 {vr(VQ+4*ks,4)}, {x1} offset:{64*ks}")

    def k_read(Tn):
        def f():
            P.wait(sop[8*Tn + 7])
            for ks in range(8):
                P(f"ds_read_b128 {ar(32*Tn + 4*ks, 4)}, {vKR1 if Tn & 1 else vKR0} offset:{64*ks}")
        return f

    def qk(Tn):
        d = VD + 4 * (Tn & 3)
        for ks in range(8):
            P(f"v_mfma_f32_16x16x32_bf16 {vr(d,4)}, {ar(32*Tn + 4*ks, 4)}, {vr(VQ+4*ks,4)}, {'0' if ks == 0 else vr(d,4)}")

    def qk_sel(Tn):
        d = VD + 4 * (Tn & 3)
        for tt in range(2):
            P(f"v_cndmask_b32 v{VS+2*Tn+tt}, v{d+2*tt}, v{d+2*tt+1}, {mPAR}")
        for tt in range(2):
            rb(P, v(VS+2*Tn+tt), v(VS+2*Tn+tt))

    vm_, vl_ = T + 4, T + 5

    def lanered(op, r, x):
        P(f"{op}_dpp {r}, {r}, {r} row_ror:8 {FULL}", f"v_mov_b32 {x}, {r}", f"v_permlane16_swap_b32 {r}, {x}",
          f"{op} {r}, {r}, {x}", f"v_mov_b32 {x}, {r}", f"v_permlane32_swap_b32 {r}, {x}", f"{op} {r}, {r}, {x}")

    def softmax1a():
        m = v(vm_)
        P(f"v_max3_f32 {m}, v{VS}, v{VS+1}, v{VS+2}")
        for i in range(3, 15, 2):
            P(f"v_max3_f32 {m}, {m}, v{VS+i}, v{VS+i+1}")
        P(f"v_max_f32 {m}, {m}, v{VS+15}")
        lanered("v_max_f32", m, v(T))
        P(f"s_mov_b32 {t0}, {CSC}")
        for i in range(16):
            P(f"v_sub_f32 v{VS+i}, v{VS+i}, {m}")
        for i in range(16):
            P(f"v_mul_f32 v{VS+i}, {t0}, v{VS+i}")

    def softmax1b():
        l = v(vl_)
        for i in range(16):
            P(f"v_exp_f32 v{VS+i}, v{VS+i}")
        P(f"v_add_f32 {l}, v{VS}, v{VS+1}")
        for i in range(2, 16):
            P(f"v_add_f32 {l}, {l}, v{VS+i}")
        lanered("v_add_f32", l, v(T))
        P(f"s_lshl3_add_u32 {t0}, {sB}, {sHKV}", f"s_lshl_b32 {t0}, {t0}, 9", f"s_add_u32 {t0}, {t0}, {MLBUF}",
          f"v_and_b32 v{T+6}, 31, {vL}", f"v_lshl_add_u32 v{T+6}, v{T+6}, 4, {t0}",
          f"s_lshl2_add_u32 {t1}, {sS}, {sW}", f"s_lshl4_add_u32 {t0}, {t1}, {t0}",
          f"v_lshl_add_u32 v{T}, {vL}, 6, {t0}", f"v_and_b32 v{T+1}, 59, {vL}", f"v_cmp_eq_u32 vcc, 0, v{T+1}",
          f"v_mov_b32 v{T+1}, {OOB}", f"v_cndmask_b32 v{T}, v{T+1}, v{T}, vcc",
          f"v_or_b32 v{VD+12}, {sTL}, v{vm_}", f"v_mov_b32 v{VD+13}, {l}", f"v_mov_b32 v{VD+14}, {sT}")
        P.vm(f"buffer_store_dwordx3 {vr(VD+12,3)}, v{T}, {srd(WS_)}, 0 offen {c['loc']} ;@st_ml")

    def mlchk(r):
        return [f"v_xor_b32 v{r}, {sTL}, v{r}", f"v_xor_b32 v{r+2}, {sT}, v{r+2}", f"v_lshl_or_b32 v{r+2}, v{r}, 16, v{r+2}",
                f"v_cmp_ne_u32 vcc, 0, v{r+2}"]

    ml_issue, ml_verify = poll(P, c, [f"buffer_load_dwordx3 {vr(VD,3)}, v{T+6}, {srd(WS_)}, 0 offen sc1"], mlchk(VD), "ml")
    gr_issue, gr_verify = poll(P, c, [f"buffer_load_dwordx3 {vr(cGA,3)}, v{cCB}, {srd(WS_)}, 0 offen sc1"], mlchk(cGA), "grp",
                               pre=[f"s_lshl4_add_u32 {t0}, {sW}, {sHKV}", f"s_lshl_b32 {t0}, {t0}, 9", f"s_add_u32 {t0}, {t0}, {MLBUF}",
                                    f"v_bfe_u32 v{cCB}, {vL}, 4, 1", f"v_lshlrev_b32 v{cCB}, 12, v{cCB}",
                                    f"v_and_b32 v{cCB+1}, 15, {vL}", f"v_lshlrev_b32 v{cCB+1}, 4, v{cCB+1}", f"v_add3_u32 v{cCB}, v{cCB}, v{cCB+1}, {t0}"])

    def softmax2a():
        ml_verify()
        M, L = v(VD+2), v(VD+3)
        P(f"v_max_f32_dpp {M}, v{VD}, v{VD} row_ror:8 {FULL}")
        for r in (4, 2, 1):
            P(f"v_max_f32_dpp {M}, {M}, {M} row_ror:{r} {FULL}")
        P(f"s_mov_b32 {t0}, {CSC}", f"v_sub_f32 {L}, v{VD}, {M}", f"v_mul_f32 {L}, {t0}, {L}", f"v_exp_f32 {L}, {L}",
          f"v_mul_f32 {L}, {L}, v{VD+1}")
        for r in (8, 4, 2, 1):
            P(f"v_add_f32_dpp {L}, {L}, {L} row_ror:{r} {FULL}")
        P(f"v_readlane_b32 {t1}, {M}, 0", f"v_readlane_b32 {t2}, {M}, 16", f"v_readlane_b32 {t3}, {L}, 0", f"v_readlane_b32 {t4}, {L}, 16",
          f"v_mov_b32 {M}, {t1}", f"v_mov_b32 v{VD}, {t2}", f"v_mov_b32 {L}, {t3}", f"v_mov_b32 v{VD+1}, {t4}",
          f"v_cndmask_b32 {M}, {M}, v{VD}, {mH}", f"v_cndmask_b32 {L}, {L}, v{VD+1}, {mH}",
          f"v_sub_f32 {M}, v{vm_}, {M}", f"v_mul_f32 {M}, {t0}, {M}", f"v_exp_f32 {M}, {M}", f"v_rcp_f32 {L}, {L}",
          f"v_mul_f32 {M}, {M}, {L}")
        for i in range(16):
            P(f"v_mul_f32 v{VS+i}, v{VS+i}, {M}")

    def softmax2b():
        for i in range(16):
            P(f"v_cvt_pk_bf16_f32 v{VS+i}, v{VS+i}, v{VS+i}")
        for i in range(16):
            P(f"v_and_b32 v{VA+2*i}, v{VS+i}, {vM0}", f"v_and_b32 v{VA+2*i+1}, v{VS+i}, {vM1}")

    def pv(vi):
        p, t = vi >> 4, vi & 15
        d = VACC + 8 * (p & 1)
        r = 4 * (vi & 31)
        P.wait(sop[64 + vi])
        for hf in range(2):
            P(f"v_mfma_f32_16x16x16_bf16 {vr(d+4*hf,4)}, {vr(VA+2*t,2)}, {ar(r+2*hf,2)}, {'0' if t == 0 else vr(d+4*hf,4)}")

    def pv_merge(p):
        d = VACC + 8 * (p & 1)
        for i in range(4):
            P(f"v_permlane32_swap_b32 v{d+i}, v{d+4+i}")
        for i in range(4):
            P(f"v_add_f32_dpp v{d+i}, v{d+4+i}, v{d+i} row_ror:8 {FULL}")

    def opart_write(p):
        d = VACC + 8 * (p & 1)
        pv_merge(p)
        if p == 0:
            P(f"s_lshl_b32 {t0}, {sW}, 9", f"s_add_u32 {t0}, {t0}, {OPART}", f"v_add_u32 v{T+7}, {t0}, {vOL}")
        P(f"s_mov_b64 exec, {mN8}", f"ds_write_b128 v{T+7}, {vr(d,4)} offset:{2048*p}", "s_mov_b64 exec, -1")

    def opart_publish():
        x = v(T)
        P(f"s_lshl_b32 {t0}, {sW}, 11", f"s_add_u32 {t0}, {t0}, {OPART}", f"v_add_u32 {x}, {t0}, {vOL}")
        for w in range(4):
            P(f"ds_read_b128 {vr(VD+4*w,4)}, {x} offset:{512*w}")
        P(f"s_add_u32 {t0}, {sS}, {sW}", f"s_add_u32 {t0}, {t0}, 1", f"s_and_b32 {t0}, {t0}, 3", f"s_lshl_b32 {t0}, {t0}, 3",
          f"s_and_b32 {t1}, s2, 0xe7", f"s_or_b32 {t0}, {t0}, {t1}", f"s_mul_i32 {t0}, {t0}, 1536",
          f"s_lshl_b32 {t1}, {sW}, 9", f"s_add_u32 {t1}, {t1}, {OBUF}", f"s_cmp_eq_u32 {sW}, 3", f"s_cselect_b32 {t1}, {OOB}, {t1}",
          f"s_add_u32 {t0}, {t0}, {t1}", f"s_mul_i32 {t2}, s2, 1536", f"s_add_u32 {t1}, {t1}, {t2}",
          f"v_and_b32 v{T+6}, 0x1ff, {vST}",
          f"v_add_u32 v{T+1}, {t0}, v{T+6}", f"v_mov_b32 v{T+2}, {OOB}", f"v_cndmask_b32 v{T+1}, v{T+2}, v{T+1}, {mN8}",
          f"v_add_u32 v{T+6}, {t1}, v{T+6}", f"v_and_b32 v{T+2}, 3, {vL}", f"v_lshlrev_b32 v{T+2}, 3, v{T+2}")
        tag2(P, VS, v(T+2))
        P.lgk()
        for i in range(4):
            P(f"v_add_f32 v{VD+i}, v{VD+i}, v{VD+4+i}", f"v_add_f32 v{VD+8+i}, v{VD+8+i}, v{VD+12+i}")
        for i in range(4):
            P(f"v_add_f32 v{VD+4+i}, v{VD+i}, v{VD+8+i}")
        for i in range(4):
            P(f"v_bfi_b32 v{VD+4+i}, 3, v{VS+i}, v{VD+4+i}")
        P.vm(f"buffer_store_dwordx4 {vr(VD+4,4)}, v{T+1}, {srd(WS_)}, 0 offen {c['loc']} ;@st_o")
        P(f"s_cmp_eq_u32 {sW}, 3", f"s_cselect_b32 {t0}, 0, 3")
        for i in range(4):
            P(f"v_and_b32 v{VS+i}, {t0}, v{VS+i}")

    of_issue, of_verify = poll(P, c, [f"buffer_load_dwordx4 {vr(VD,4)}, v{T+6}, {srd(WS_)}, 0 offen sc1"],
                               [f"v_xor_b32 v{VD+k}, v{VS+k}, v{VD+k}" for k in range(4)] +
                               [f"v_or3_b32 v{VD+4}, v{VD}, v{VD+1}, v{VD+2}", f"v_or_b32 v{VD+4}, v{VD+4}, v{VD+3}",
                                f"v_and_b32 v{VD+4}, 3, v{VD+4}", f"v_cmp_ne_u32 vcc, 0, v{VD+4}"], "of")

    lin = {}

    def lin_load(r, key, base, i, goff):
        def f():
            P(f"s_add_u32 {t0}, {base}, {1024*i}", f"s_mov_b32 m0, {t0}", f"s_mov_b32 {t1}, {goff + 1024*i}")
            lin[key] = P.vm(f"buffer_load_dwordx4 {vLIN}, {srd(r)}, {t1} offen {c['wflag']} lds")
        return f

    def tr_rows(area, dst, lo, hi, alt=None):
        x = vWOR
        if area:
            x = v(T+3)
            P(f"v_add_u32 {x}, {area}, {vWOR}")
        n = 0
        for t in range(7):
            for ks in range(2):
                for u in range(2):
                    if lo <= n < hi:
                        P(f"ds_read_b64_tr_b16 {ar(dst(ks, t) + 2*u, 2)}, {alt if (alt and ks == 0) else x} offset:{896*(8*ks + 4*u) + 32*t}")
                    n += 1

    wo_reg = lambda ks, t: 128 + 16 * t + 4 * ks
    w2_reg = lambda ks, t: 8 * t + 4 * ks

    if not svc:
        def w13_setup():
            P(f"s_lshl_b32 {t0}, {sJ}, 7", f"s_mul_i32 {t1}, {sW}, {112*3584}", f"s_add_u32 {t0}, {t0}, {t1}")
            mk_srd(P, WA_, pW1, t0, 0 if "w13" in c["abl"] else 111 * 3584 + 128)
            mk_srd(P, WB_, pW3, t0, 0 if "w13" in c["abl"] else 111 * 3584 + 128)
            x0, x1 = v(T), v(T+1)
            P(f"v_lshrrev_b32 {x0}, 3, {vL}", f"v_mul_u32_u24 {x0}, 3584, {x0}", f"v_and_b32 {x1}, 7, {vL}",
              f"v_lshl_add_u32 {vWG}, {x1}, 4, {x0}",
              f"v_bfe_u32 {x0}, {vL}, 4, 1", f"v_mul_u32_u24 {x0}, 2112, {x0}", f"v_bfe_u32 {x1}, {vL}, 3, 1",
              f"v_lshl_add_u32 {x0}, {x1}, 9, {x0}", f"v_lshrrev_b32 {x1}, 5, {vL}", f"v_lshl_add_u32 {x0}, {x1}, 8, {x0}",
              f"v_bfe_u32 {x1}, {vL}, 2, 1", f"v_lshl_add_u32 {x0}, {x1}, 7, {x0}", f"v_and_b32 {x1}, 3, {vL}",
              f"v_lshl_add_u32 {x0}, {x1}, 3, {x0}", f"v_add_u32 {vWR}, {sWST}, {x0}")

        w13_reg = lambda ks, m, t: VW + 32 * ks + 4 * (4 * m + t) if ks < 3 else VW + 96 + 2 * (4 * m + t)
        w13op = {}

        def w13_load(ch, q, u):
            ks, m = ch >> 1, ch & 1

            def f():
                P(f"s_add_u32 {t0}, {sWST}, {4224*(ch % 3) + 1056*(2*q + u)}", f"s_mov_b32 m0, {t0}",
                  f"s_mov_b32 {t1}, {(32*ks + 16*u + 8*q) * 3584}")
                w13op[ch] = P.vm(f"buffer_load_dwordx4 {vWG}, {srd(WB_ if m else WA_)}, {t1} offen {c['wflag']} lds")
            return f

        def w13_read(ch):
            ks, m = ch >> 1, ch & 1

            def f():
                P.wait(w13op[ch])
                for t in range(4):
                    for u in range(2 if ks < 3 else 1):
                        P(f"ds_read_b64_tr_b16 {vr(w13_reg(ks, m, t) + 2*u, 2)}, {vWR} offset:{4224*(ch % 3) + 1056*u + 32*t}")
            return f

        ids(P)
        kv_setup(P, c, True)
        at(3, setup_blocks)
        at(D - 1, ws_srd)
        at(16, mk_tag)
        at(D - 1, wq_setup)
        at(D - 1, setup_common)
        at(D - 1, w13_setup)
        for i in range(4):
            at(D - 1 + 2 * i, wq_load(i))
        at(D - 1, prefetch_code)
        lo, hi = c["W13"]
        lst = [(ch, q, u) for ch in range(8) for q in range(2) for u in range(2 if ch < 6 else 1)]
        pos = [lo + (hi - lo) * i // len(lst) for i in range(len(lst))]
        rd = {}
        for (ch, q, u), n in zip(lst, pos):
            if ch >= 3:
                assert n > rd[ch - 3], (ch, n, rd)
            at(n, w13_load(ch, q, u))
            rd[ch] = done_slot(n + 1)
        for ch in range(8):
            ev.setdefault(rd[ch], []).insert(0, w13_read(ch))
            ev.setdefault(rd[ch] + 1, []).insert(0, P.lgk)
        w13_done = rd[7] + 1
        H0, Q0 = c["H0"], c["Q0"]
    else:
        CV, XV = VQ, VQ + 8
        SB, WT, MD, YV = VW, VW + 16, VW + 32, VW + 48
        PIV, XT = VS, VS + 2
        mop = {}

        def mod_setup():
            P(f"s_lshl_b32 {t0}, {sG}, 7", f"s_mul_i32 {t1}, {sW}, {112*5376}", f"s_add_u32 {t0}, {t0}, {t1}",
              f"s_mov_b32 s{WA_+2}, {111*5376 + 128}", f"s_mov_b32 s{WA_+3}, 0x20000",
              f"s_max_u32 {t3}, {sG}, 7", f"s_min_u32 {t3}, {t3}, 13", f"s_sub_u32 {t3}, {t3}, 7")
            x0, x1 = v(T+4), v(T+5)
            P(f"v_lshrrev_b32 {x0}, 3, {vL}", f"v_mul_u32_u24 {x0}, 5376, {x0}", f"v_and_b32 {x1}, 7, {vL}",
              f"v_lshl_add_u32 {vWG}, {x1}, 4, {x0}",
              f"v_mul_u32_u24 {x0}, 896, {x1}", f"v_mov_b32 v{PIV+1}, {x0}", f"v_lshrrev_b32 {x1}, 4, {vL}", f"v_lshl_add_u32 {x0}, {x1}, 3, {x0}",
              f"s_lshl2_add_u32 {t3}, {t3}, {sW}", f"s_lshl_b32 {t3}, {t3}, 5", f"v_add_u32 v{XT}, {t3}, {x0}",
              f"s_mul_i32 {t3}, {sW}, 224", f"v_add_u32 {x0}, {t3}, {x0}", f"v_and_b32 {x1}, 8, {vL}", f"v_lshl_add_u32 {x1}, {x1}, 2, {x0}",
              "s_waitcnt lgkmcnt(0)",
              f"s_add_u32 s{WA_}, s{pWM}, {t0}", f"s_addc_u32 s{WA_+1}, s{pWM+1}, 0")
            for i in range(4):
                mop["c"] = P.vm(f"global_load_dwordx2 {vr(CV+2*i,2)}, {x0 if i == 3 else x1}, {sp(pC)} offset:{64*i}")

        def x_loads():
            x0, x1 = v(T+4), v(T+5)
            for i in range(4):
                P.vm(f"global_load_dwordx2 {vr(XV+2*i,2)}, {x0 if i == 3 else x1}, {sp(pX)} offset:{64*i}")
            P.vm(f"global_load_ushort v{PIV}, v{PIV+1}, {sp(pX)}")
            mop["x"] = P.vm(f"global_load_dwordx2 {vr(XT,2)}, v{XT}, {sp(pX)}")

        def silu_c(i):
            def f():
                P.wait(mop["c"])
                x = [v(VD+k) for k in range(4)]
                y = [v(VD+4+k) for k in range(4)]
                r = [v(VD+8+k) for k in range(4)]
                q = [v(VD+12+k) for k in range(4)]
                P(f"v_lshlrev_b32 {x[0]}, 16, v{CV+2*i}", f"v_and_b32 {x[1]}, 0xffff0000, v{CV+2*i}",
                  f"v_lshlrev_b32 {x[2]}, 16, v{CV+2*i+1}", f"v_and_b32 {x[3]}, 0xffff0000, v{CV+2*i+1}")
                for k in range(4):
                    P(f"v_mul_f32 {y[k]}, {LOG2E | 0x80000000:#x}, {x[k]}")
                for k in range(4):
                    P(f"v_exp_f32 {y[k]}, {y[k]}")
                for k in range(4):
                    P(f"v_add_f32 {y[k]}, 1.0, {y[k]}", f"v_min_f32 {y[k]}, 0x7f000000, {y[k]}")
                for k in range(4):
                    P(f"v_rcp_f32 {r[k]}, {y[k]}")
                for k in range(4):
                    P(f"v_mul_f32 {q[k]}, {x[k]}, {r[k]}")
                for k in range(4):
                    P(f"v_fma_f32 {x[k]}, -{q[k]}, {y[k]}, {x[k]}", f"v_fmac_f32 {q[k]}, {x[k]}, {r[k]}")
                P(f"v_cvt_pk_bf16_f32 v{SB+4*i}, {q[0]}, {q[1]}", f"v_cvt_pk_bf16_f32 v{SB+4*i+1}, {q[2]}, {q[3]}")
                if i < 3:
                    P(f"v_mov_b32_dpp v{SB+4*i+2}, v{SB+4*i} row_ror:8 {FULL}", f"v_mov_b32_dpp v{SB+4*i+3}, v{SB+4*i+1} row_ror:8 {FULL}")
            return f

        S1, S2 = VS + 4, VS + 5

        def stats(i):
            def f():
                P.wait(mop["x"])
                x = [v(T+k) for k in range(4)]
                if i == 0:
                    P(f"v_lshlrev_b32 v{PIV}, 16, v{PIV}", f"v_mov_b32 v{S1}, 0", f"v_mov_b32 v{S2}, 0")
                if i == 3:
                    P(f"s_mov_b64 exec, {mN8}")
                P(f"v_lshlrev_b32 {x[0]}, 16, v{XV+2*i}", f"v_and_b32 {x[1]}, 0xffff0000, v{XV+2*i}",
                  f"v_lshlrev_b32 {x[2]}, 16, v{XV+2*i+1}", f"v_and_b32 {x[3]}, 0xffff0000, v{XV+2*i+1}")
                for k in range(4):
                    P(f"v_sub_f32 {x[k]}, {x[k]}, v{PIV}")
                for k in range(4):
                    P(f"v_add_f32 v{S1}, v{S1}, {x[k]}", f"v_fmac_f32 v{S2}, {x[k]}, {x[k]}")
                if i == 3:
                    P("s_mov_b64 exec, -1")
                    lanered("v_add_f32", v(S1), v(T))
                    lanered("v_add_f32", v(S2), v(T))
                    P(f"s_lshl_b32 {t0}, {sW}, 6", f"s_add_u32 {t0}, {t0}, {STAT}", f"v_and_b32 v{T}, 7, {vL}",
                      f"v_lshl_add_u32 v{T+1}, v{T}, 3, {t0}", f"ds_write_b64 v{T+1}, {vr(S1,2)}",
                      f"v_lshlrev_b32 v{T}, 3, v{T}", f"v_add_u32 v{T}, {STAT}, v{T}")
                    P.lgk()
                    P("s_barrier")
                    for w in range(4):
                        P(f"ds_read_b64 {vr(VD+2*w,2)}, v{T} offset:{64*w}")
            return f

        def ln_x():
            P.lgk()
            s = VD
            mean, var, rs = v(s+2), v(s+3), v(s+4)
            P(f"v_add_f32 v{s}, v{s}, v{s+2}", f"v_add_f32 v{s+1}, v{s+1}, v{s+3}", f"v_add_f32 v{s+4}, v{s+4}, v{s+6}",
              f"v_add_f32 v{s+5}, v{s+5}, v{s+7}", f"v_add_f32 v{s}, v{s}, v{s+4}", f"v_add_f32 v{s+1}, v{s+1}, v{s+5}",
              f"v_mul_f32 v{s}, {RN:#x}, v{s}", f"v_mul_f32 v{s+1}, {RN:#x}, v{s+1}",
              f"v_add_f32 {mean}, v{PIV}, v{s}", f"v_fma_f32 {var}, -v{s}, v{s}, v{s+1}", f"v_max_f32 {var}, 0, {var}")
            rb(P, mean, mean); rb(P, var, var)
            P(f"v_add_f32 {var}, {EPS:#x}, {var}"); rb(P, var, var)
            P(f"v_sqrt_f32 {var}, {var}"); rb(P, var, var)
            P(f"v_rcp_f32 {rs}, {var}")
            y = [v(YV+k) for k in range(4)]
            z, e = v(s+8), v(s+9)
            P(f"v_lshlrev_b32 {y[0]}, 16, v{XT}", f"v_and_b32 {y[1]}, 0xffff0000, v{XT}",
              f"v_lshlrev_b32 {y[2]}, 16, v{XT+1}", f"v_and_b32 {y[3]}, 0xffff0000, v{XT+1}")
            for k in range(4):
                P(f"v_sub_f32 {y[k]}, {y[k]}, {mean}"); rb(P, y[k], y[k])
                P(f"v_mul_f32 {z}, {y[k]}, {rs}", f"v_fma_f32 {e}, -{z}, {var}, {y[k]}", f"v_fma_f32 {y[k]}, {e}, {rs}, {z}")
                rb(P, y[k], y[k])

        def unit_addr(base):
            def f():
                P(f"v_lshrrev_b32 v{T}, 2, {vL}", f"v_and_b32 v{T+1}, 3, {vL}", f"v_lshlrev_b32 v{T+1}, 3, v{T+1}",
                  f"v_lshl_add_u32 v{T}, v{T}, 7, v{T+1}", f"v_add_u32 {vWR}, {base}, v{T}")
            return f

        def unit_mfma(i):
            P.lgk()
            for t in range(4):
                d = vr(MD + 4 * t, 4)
                P(f"v_mfma_f32_16x16x16_bf16 {d}, {vr(WT + 8*(i & 1) + 2*t, 2)}, {vr(SB+2*i,2)}, {'0' if i == 0 else d}")

        def unit_step(i, op, ring):
            def f():
                P.wait(op())
                if i:
                    unit_mfma(i - 1)
                for t in range(4):
                    P(f"ds_read_b64_tr_b16 {vr(WT + 8*(i & 1) + 2*t, 2)}, {vWR} offset:{2048*(i % ring) + 32*t}")
            return f

        def unit_write(base, area):
            x0, x1 = v(T), v(T+1)
            P(f"v_lshrrev_b32 {x0}, 4, {vL}", f"v_and_b32 {x1}, 7, {vL}", f"v_lshlrev_b32 {x1}, 4, {x1}",
              f"v_lshl_add_u32 {x0}, {x0}, 7, {x1}", f"v_add_u32 {x1}, {base}, {x0}",
              f"s_lshl_b32 {t0}, {sW}, 9", f"v_add_u32 {x0}, {t0}, {x0}",
              f"v_and_b32 v{T+2}, 15, {vL}", f"v_and_b32 v{T+3}, 16, {vL}", f"v_lshl_add_u32 v{T+2}, v{T+2}, 7, v{T+3}",
              f"s_lshl_b32 {t0}, {sW}, 5", f"v_add_u32 v{T+2}, {t0}, v{T+2}",
              f"s_cmp_lt_u32 {sG}, {14 if area == AREA_B else 0}", "s_cselect_b64 vcc, -1, 0", f"v_cndmask_b32 {x0}, v{T+2}, {x0}, vcc",
              f"v_add_u32 v{YV+4}, {area}, {x0}")
            unit_mfma(6)
            P(f"s_mov_b64 exec, {mN8}")
            for t in range(4):
                P(f"ds_write_b128 {x1}, {vr(MD+4*t,4)} offset:{512*t}")
            P("s_mov_b64 exec, -1")

        def unit_final(stride, urgent):
            x0, x1 = v(T), v(T+1)
            m = MD
            for w in range(4):
                P(f"ds_read_b128 {vr(m+4*w,4)}, v{YV+4} offset:{stride*w}")
            P(f"s_lshl_b32 {t1}, {sG}, 8", f"s_mul_i32 {t2}, {sW}, 14336", f"s_add_u32 {t1}, {t1}, {t2}",
              f"s_add_u32 {t1}, {t1}, {MODBUF - (14 if urgent else 4) * 256}")
            if not urgent:
                P(f"s_cmp_ge_u32 {sG}, 22", f"s_cselect_b32 {t1}, {t1}, {OOB}")
            P(f"v_lshrrev_b32 {x0}, 4, {vL}", f"v_mul_u32_u24 {x0}, 7168, {x0}", f"v_and_b32 {x1}, 15, {vL}", f"v_lshl_add_u32 {x0}, {x1}, 4, {x0}",
              f"v_add_u32 {x0}, {t1}, {x0}", f"v_mov_b32 v{T+2}, {OOB}", f"v_cmp_gt_u32 vcc, 32, {vL}", f"v_cndmask_b32 {x1}, v{T+2}, {x0}, vcc")
            if urgent:
                P(f"s_lshl2_add_u32 {t0}, {sG}, {sW}", f"s_lshl_b32 {t0}, {t0}, 9", f"s_add_u32 {t0}, {t0}, {HBUF}",
                  f"v_and_b32 {x0}, 48, {vL}", f"v_and_b32 v{T+3}, 7, {vL}", f"v_lshlrev_b32 v{T+3}, 4, v{T+3}", f"v_lshl_add_u32 {x0}, {x0}, 3, v{T+3}",
                  f"v_add_u32 {x0}, {t0}, {x0}", f"v_cndmask_b32 {x0}, v{T+2}, {x0}, {mN8}",
                  f"s_cmp_lt_u32 {sG}, 14", "s_cselect_b64 vcc, -1, 0", f"v_cndmask_b32 {x1}, {x1}, {x0}, vcc")
            P.lgk()
            for i in range(4):
                P(f"v_add_f32 v{m+i}, v{m+i}, v{m+4+i}", f"v_add_f32 v{m+8+i}, v{m+8+i}, v{m+12+i}")
            for i in range(4):
                P(f"v_add_f32 v{m+i}, v{m+i}, v{m+8+i}")
            if urgent:
                skip = P.label("sa")
                P(f"s_sub_u32 {t0}, {sG}, 7", f"s_cmp_lt_u32 {t0}, 7", f"s_cbranch_scc0 {skip}")
                for k in range(4):
                    rb(P, v(m+k), v(m+k))
                for k in range(4):
                    P(f"v_add_f32 v{m+k}, 1.0, v{m+k}")
                for k in range(4):
                    rb(P, v(m+k), v(m+k))
                for k in range(4):
                    P(f"v_mul_f32 v{m+k}, v{YV+k}, v{m+k}")
                P(f"{skip}:")
            for k in range(4):
                rb(P, v(m+k), v(m+k))
            for k in range(4):
                P(f"v_or_b32 v{m+k}, {half(k)}, v{m+k}")
            P.vm(f"buffer_store_dwordx4 {vr(m,4)}, {x1}, {srd(WS_)}, 0 offen sc1 ;@st_mod")

        def urgent_end():
            unit_write(sWST, AREA_B)
            P.lgk()
            P("s_barrier")
            unit_final(REG_W, True)

        lop = {}

        def late_load(i):
            def f():
                if i == 0:
                    P(f"s_add_u32 s{WA_}, s{WA_}, 1280", f"s_addc_u32 s{WA_+1}, s{WA_+1}, 0",
                      f"s_cmp_ge_u32 {sG}, 22", f"s_cselect_b32 s{WA_+2}, {111*5376 + 128}, 0")
                    unit_addr(sSL0)()
                P(f"s_add_u32 m0, {sSL0}, {1024*(i & 7)}", f"s_mov_b32 {t1}, {8*i*5376}")
                lop[i] = P.vm(f"buffer_load_dwordx4 {vWG}, {srd(WA_)}, {t1} offen {c['wflag']} lds")
            return f

        ids(P)
        P(f"s_lshl2_add_u32 {sG}, {sB}, {sJ}", f"s_sub_u32 {sG}, {sG}, 28")
        mod_setup()
        n0 = -14 + c["DI"]
        at(n0 - 3, x_loads)
        at(n0 - 1, lambda: kv_setup(P, c, False))
        at(n0 - 1, ws_srd)
        at(n0 - 1, setup_common)
        at(n0 - 1, setup_blocks)
        at(n0 - 1, unit_addr(sWST))
        for i in range(4):
            at(n0 - 1 + i, silu_c(i))
        for i in range(7):
            at(done_slot(-14 + 2 * i + 1), unit_step(i, (lambda i: lambda: sop[-14 + 2 * i + 1])(i), 7))
        for i in range(4):
            at(n0 + 4 + i, stats(i))
        at(n0 + 9, ln_x)
        at(n0 + 10, mk_tag)
        assert n0 + 10 <= done_slot(-1)
        at(done_slot(-1), urgent_end)
        nu = done_slot(-1) + 1
        at(nu, wq_setup)
        for i in range(4):
            at(nu + 1 + 2 * i, wq_load(i))
        w13_done = nu
        H0, Q0 = c["HI"], c["QI"]
        lo, hi = c["LU"]
        assert lo > done_slot(55)
        lpos = [lo + (hi - lo) * i // 14 for i in range(14)]
        lst = [done_slot(lpos[2 * i + 1] + 1) for i in range(7)]
        for i in range(7):
            at(lst[i], unit_step(i, (lambda i: lambda: lop[2 * i + 1])(i), 4))
        for i in range(14):
            if i >= 8:
                assert lpos[i] >= lst[(i - 8) // 2 + 1], (i, lpos, lst)
            at(lpos[i], late_load(i))
        assert lst[6] < 112 + DV and lpos[13] < c['C0']
        at(lst[6] + 1, lambda: unit_write(sSL0, SLOT0))

    at(18, setup_tail)
    at(H0, h_issue)
    at(done_slot(H0 + 1), q_unit)
    assert Q0 > done_slot(H0 + 1)
    at(Q0, q_issue)
    nq = done_slot(Q0 + 1)
    assert nq >= w13_done
    at(nq, q_gather)
    kr = {}
    for Tn in range(8):
        kr[Tn] = done_slot(8 * Tn + 7)
        assert kr[Tn] < 8 * Tn + 16
        ev.setdefault(kr[Tn], []).insert(0, k_read(Tn))
        at(kr[Tn], P.lgk)
    n, used = nq + 1, 0
    qks = {}
    for Tn in range(8):
        if n <= kr[Tn]:
            n, used = kr[Tn] + (0 if Tn == 7 else 1), 0
        at(n, P.lgk)
        at(n, (lambda Tn: lambda: qk(Tn))(Tn))
        qks[Tn] = n
        if Tn < 4:
            assert n < 64 + 8 * Tn
        used += 1
        if used == 2:
            n, used = n + 1, 0
    for Tn in range(8):
        ev.setdefault(qks[Tn] + 1, []).insert(0, (lambda Tn: lambda: qk_sel(Tn))(Tn))
    n = qks[7] + 1
    at(n, softmax1a)
    at(n + 1, softmax1b)
    assert c["M0"] > n + 1
    at(c["M0"], ml_issue)
    nm = done_slot(c["M0"] + 1)
    at(nm, softmax2a)
    at(nm + 1, softmax2b)
    pv0 = nm + 2
    vi, n = 0, pv0
    pend = {}
    while n < 128:
        k = 0
        while k < 6 and vi < 64 and done_slot(64 + vi) <= n:
            assert n < 64 + 32 + vi, "V ring overrun"
            at(n, (lambda vi: lambda: pv(vi))(vi))
            if vi & 15 == 15:
                pend[vi >> 4] = n
            vi += 1
            k += 1
        n += 1
    for p in range(3):
        ev.setdefault(pend[p] + 1, []).insert(0, (lambda p: lambda: opart_write(p))(p))
    X3 = pend[2] + 1
    X1 = c["X1"]
    a0, a1 = nq + 1, X1 - DV - 1
    for i in range(14):
        at(a0 + (a1 - a0) * i // 14, lin_load(WO_, "wo0", sWST, i, 0))

    def bar_x1():
        P.wait(lin["wo0"])
        P.lgk()
        P("s_barrier")
        tr_rows(AREA_B, wo_reg, 0, 14)
    at(X1, bar_x1)
    at(X1 + 1, lambda: tr_rows(AREA_B, wo_reg, 14, 28))
    a0, a1 = X1, X3 - DV - 1
    for i in range(14):
        at(a0 + (a1 - a0) * i // 14, lin_load(WO_, "wo1", sSL1, i, 256 * 896))

    def bar_x3():
        P.wait(lin["wo1"])
        P.lgk()
        P("s_barrier")
        opart_publish()
        if svc:
            unit_final(8448, False)
    at(X3, bar_x3)
    at(X3 + 1, lambda: tr_rows(AREA_A, lambda ks, t: wo_reg(ks + 2, t), 0, 14))
    at(X3 + 2, lambda: tr_rows(AREA_A, lambda ks, t: wo_reg(ks + 2, t), 14, 28))

    vTG = vM0
    tpre = [f"v_lshlrev_b32 {vTG}, 3, {vL}", f"v_bfe_u32 {vTG}, {sT}, {vTG}, 8",
            f"v_and_b32 v{T}, 7, {vL}", f"v_cmp_gt_u32 {mT}, 7, v{T}", f"v_min_u32 v{T}, 6, v{T}"]
    if not svc:
        cpre = tpre + [
                f"s_lshl2_add_u32 {t0}, {sB}, {sW}", f"s_lshl_b32 {t1}, {t0}, 14", f"s_add_u32 {t1}, {t1}, {PBUF}", f"v_add_u32 {vGA}, {t1}, {vLIN}",
                f"v_and_b32 v{T+1}, 24, {vL}", f"v_lshl_add_u32 v{T}, v{T}, 5, v{T+1}", f"v_lshrrev_b32 v{T+1}, 5, {vL}",
                f"v_lshl_add_u32 v{T}, v{T+1}, 2, v{T}", f"s_mul_i32 {t0}, {t0}, 224", f"v_add_u32 {vKR0}, {t0}, v{T}",
                f"s_mul_i32 {t0}, {sB}, 5376", f"s_add_u32 {t0}, {t0}, {MODBUF}", f"v_lshl_add_u32 {vKR1}, {vKR0}, 1, {t0}"]
        c_issue, c_verify = poll(P, c, [f"global_load_dword v{cX+1}, {vKR0}, {sp(pX)}",
                                        f"buffer_load_dwordx2 {vr(cGA,2)}, {vKR1}, {srd(WS_)}, 0 offen sc1",
                                        f"buffer_load_dwordx2 {vr(cSB,2)}, {vKR1}, {srd(WS_)}, 0 offen offset:1792 sc1",
                                        f"buffer_load_dwordx2 {vr(cCB,2)}, {vKR1}, {srd(WS_)}, 0 offen offset:3584 sc1"],
                                 [f"v_xor_b32 v{r+k}, {half(k)}, v{r+k}" for r in (cGA, cSB, cCB) for k in range(2)] +
                                 [f"v_or3_b32 v{cX}, v{cGA}, v{cGA+1}, v{cSB}", f"v_or3_b32 v{cX}, v{cX}, v{cSB+1}, v{cCB}",
                                  f"v_or_b32 v{cX}, v{cX}, v{cCB+1}", f"v_and_b32 v{cX}, 0xffff, v{cX}", f"v_cmp_ne_u32 vcc, 0, v{cX}"], "mod")

        def consts():
            c_verify()
            P(f"v_lshlrev_b32 v{cX}, 16, v{cX+1}", f"v_and_b32 v{cX+1}, 0xffff0000, v{cX+1}")
            for k in range(2):
                P(f"v_add_f32 v{cCB+k}, 1.0, v{cCB+k}")
                rb(P, v(cCB+k), v(cCB+k))
    else:
        cpre = tpre + [
                f"s_lshl_b32 {t1}, {sG}, 14", f"s_lshl_b32 {t2}, {sW}, 7", f"s_add_u32 {t1}, {t1}, {t2}", f"v_add_u32 {vGA}, {t1}, {vVB}",
                f"v_mov_b32 v{T+1}, {OOB}", f"v_cmp_gt_u32 vcc, 32, {vL}", f"v_cndmask_b32 {vWG}, v{T+1}, {vGA}, vcc", f"v_cndmask_b32 v{cSB+1}, 0, {vTG}, vcc",
                f"v_lshrrev_b32 v{T+1}, 4, {vL}", f"v_lshl_add_u32 v{T}, v{T}, 4, v{T+1}",
                f"s_mul_i32 {t0}, {sG}, 112", f"s_lshl2_add_u32 {t0}, {sW}, {t0}", f"v_add_lshl_u32 {vKR0}, v{T}, {t0}, 1",
                f"s_mul_i32 {t0}, {sB}, 5376", f"s_add_u32 {t0}, {t0}, {MODBUF}", f"v_lshl_add_u32 {vKR1}, {vKR0}, 1, {t0}",
                f"v_add_u32 v{cSB}, 5376, {vKR1}", f"v_and_b32 v{T+1}, 16, {vL}", f"v_bfe_u32 v{cCB+1}, {sT}, v{T+1}, 16"]
        c_issue, c_verify = poll(P, c, [f"global_load_short_d16_hi v{cX}, {vKR0}, {sp(pX)}",
                                        f"buffer_load_dword v{cGA}, {vKR1}, {srd(WS_)}, 0 offen sc1",
                                        f"buffer_load_dword v{cCB}, v{cSB}, {srd(WS_)}, 0 offen sc1"],
                                 [f"v_xor_b32 v{cGA}, v{cCB+1}, v{cGA}", f"v_xor_b32 v{cCB}, v{cCB+1}, v{cCB}", f"v_or_b32 v{cX+1}, v{cGA}, v{cCB}",
                                  f"v_and_b32 v{cX+1}, 0xffff, v{cX+1}", f"v_cmp_ne_u32 vcc, 0, v{cX+1}"], "mod")

        def consts():
            c_verify()
            P(f"v_and_b32 v{cX}, 0xffff0000, v{cX}")
    assert c["C0"] > nm + 1
    at(c["G0"], gr_issue)
    at(done_slot(c["G0"] + 1), gr_verify)
    assert done_slot(c["G0"] + 1) <= min(X3, c["C0"])
    if not svc and c["PF2"]:
        assert done_slot(c["PF2"] + 1) <= c["C0"]
        at(c["PF2"], prefetch_code)
    at(c["C0"], lambda: P(*cpre))
    if not svc:
        def w2_setup():
            P(f"s_mul_i32 {t0}, {sJ}, {64*896}", f"s_add_u32 {t0}, {t0}, {sSL1}")
            mk_srd(P, W2_, pW2, t0, 0 if "wo" in c["abl"] else REG_W)
            P(f"v_lshrrev_b32 v{T}, 4, {vL}", f"v_mul_u32_u24 v{T}, {REG_W - 8448}, v{T}", f"v_sub_u32 {vWR}, {vWOR}, v{T}",
              f"v_add_u32 {vWR}, {SLOT0}, {vWR}")
        a0, a1 = c["W2A"]
        assert a0 > max(kr[6], nq)
        at(a0, w2_setup)
        if c["w2late"]:
            at(127, of_issue)
        for i in range(7):
            at(127 if c["w2late"] == 2 else a0 + (a1 - a0) * i // 7, lin_load(W2_, "w2", sSL0, i, 0))
        a0, a1 = (X3 + 1, 128) if not c["w2late"] else (127, 127)
        for i in range(7):
            at(a0 + (a1 - a0) * i // 7, lin_load(W2_, "w2", sWST, 7 + i, 0))
    if svc or not c["w2late"]:
        at(127, of_issue)

    for n in range(first, 128):
        if n - depth(n) >= first:
            P.wait(sop[n - depth(n)])
        if n < 0:
            i = n + 14
            P(f"s_add_u32 m0, {sWST}, {1024*i}", f"s_mov_b32 {t1}, {8*i*5376}")
            sop[n] = P.vm(f"buffer_load_dwordx4 {vWG}, {srd(WA_)}, {t1} offen {c['wflag']} lds")
        elif n < 64:
            Tn, j = n >> 3, n & 7
            off = 1056 * j - 1024 * (j & 3)
            base = sSL1 if Tn & 1 else sSL0
            if off:
                P(f"s_add_u32 m0, {base}, {off}")
            else:
                P(f"s_mov_b32 m0, {base}")
            sop[n] = P.vm(f"buffer_load_dwordx4 {vKG}, {srd(K_)}, s{BLK + (n >> 2)} offen offset:{1024*(j & 3)} {c['kflag']} lds")
        else:
            vi_ = n - 64
            if vi_ & 15 == 0:
                P(f"s_add_u32 {t0}, {sS}, {(vi_ >> 4) + 1}", f"s_and_b32 {t0}, {t0}, 3", f"s_lshl_b32 {t0}, {t0}, 7",
                  f"v_add_u32 {vV}, {t0}, {vVB}")
            sop[n] = P.vm(f"buffer_load_dwordx4 {ar(4*(vi_ & 31), 4)}, {vV}, {srd(V_)}, s{BLK + (vi_ & 15)} offen {c['kflag']}")
        for f in ev.pop(n, []):
            f()
        if n == 100:
            stamp(1)
        mid = c["midI"] if (svc and c["midI"]) else c["mid"]
        if c["stamps"] and n in mid:
            r = MIDS[mid.index(n)]
            assert (r < 70 or r > 80 or n >= 12) if not svc else (n >= (-14 + c['DI'] if r < 70 else 12) or r > 70), (n, r)
            P(f"s_memrealtime s[{r}:{r+1}]")
    assert not ev, ev.keys()

    P(f"s_lshl2_add_u32 {t0}, {sHKV}, {sS}", f"s_lshl_b32 {t0}, {t0}, 9", f"s_add_u32 s{BLK+8}, {t0}, {PBUF}",
      f"s_mov_b32 s96, 0x00020002", f"s_mov_b32 s97, 0x00020002", f"s_lshl_b32 {t0}, {sJ}, 9", f"s_add_u32 s{BLK+9}, {t0}, {FBUF}", f"s_mov_b32 s{BLK+11}, 0xff",
      f"s_lshl_b32 {t0}, {sW}, 9", f"s_add_u32 {t0}, {t0}, {ORED}", f"v_add_u32 v{T+7}, {t0}, {vOL}")
    if not svc:
        for i in range(8):
            P(f"s_add_u32 {t0}, {sHKV}, {i+1}", f"s_and_b32 {t0}, {t0}, 7", f"s_lshl_b32 s{BLK+i}, {t0}, 11")
    while vi < 64:
        pv(vi)
        vi += 1
    stamp(2)
    of_verify()
    d = VACC + 8
    pv_merge(3)
    for i in range(4):
        P(f"v_add_f32 v{d+i}, v{d+i}, v{VD+i}")
    P(f"s_mov_b64 exec, {mN8}", f"ds_write_b128 v{T+7}, {vr(d,4)}", "s_mov_b64 exec, -1")
    P.lgk()
    P("s_barrier")
    P(f"ds_read2st64_b64 {vr(VD,4)}, {vOR} offset0:0 offset1:1", f"ds_read2st64_b64 {vr(VD+4,4)}, {vOR} offset0:2 offset1:3")
    P.lgk(1)
    P(f"v_add_f32 v{VD}, v{VD}, v{VD+2}", f"v_add_f32 v{VD+1}, v{VD+1}, v{VD+3}")
    P.lgk(0)
    P(f"v_add_f32 v{VD+4}, v{VD+4}, v{VD+6}", f"v_add_f32 v{VD+5}, v{VD+5}, v{VD+7}",
      f"v_add_f32 v{VD}, v{VD}, v{VD+4}", f"v_add_f32 v{VD+1}, v{VD+1}, v{VD+5}", f"v_cvt_pk_bf16_f32 v{VD}, v{VD}, v{VD+1}")
    OB, OD = VA, VA + 16

    def bc(dst, src, n):
        P(f"v_mov_b32_dpp v{dst}, v{src} row_newbcast:{n} {FULL}")

    def gemv_out(nks, breg, areg, dreg, soff, bsrc):
        mm = lambda t, ks: P(f"v_mfma_f32_16x16x32_bf16 {vr(dreg+4*t,4)}, {ar(areg(ks,t),4)}, {vr(breg+4*ks,4)}, {'0' if ks == 0 else vr(dreg+4*t,4)}")
        def sel(t):
            P(f"s_mov_b64 exec, {mH}" if t == 1 else "s_lshl_b64 exec, exec, 1",
              f"v_mov_b64 {vr(dreg,2)}, {vr(dreg+4*t,2)}", f"v_mov_b64 {vr(dreg+2,2)}, {vr(dreg+4*t+2,2)}")

        for k in range(4):
            bsrc(k)
        for ks in range(nks):
            if ks + 1 < nks:
                bsrc(4 * ks + 4); bsrc(4 * ks + 5)
            mm(0, ks)
            if ks + 1 < nks:
                bsrc(4 * ks + 6); bsrc(4 * ks + 7)
            mm(1, ks)
        lag = 8 // nks
        nst = 1
        for t in range(2, 7):
            for ks in range(nks):
                mm(t, ks)
            while nst <= t - lag:
                sel(nst); nst += 1
        while nst < 7:
            sel(nst); nst += 1
        P(f"s_mov_b64 exec, {mN8}", f"v_bfi_b32 v{dreg}, s{BLK+11}, {vTG}, v{dreg}")
        P.vm(f"buffer_store_dwordx4 {vr(dreg,4)}, {vST}, {srd(WS_)}, {soff} offen sc1 ;@st_pf")
        P("s_mov_b64 exec, -1")

    gemv_out(4, OB, wo_reg, OD, f"s{BLK+8}", lambda k: bc(OB + k, VD, k))
    stamp(3)

    if not svc:
        G = VQ
        ld = lambda i: f"buffer_load_dwordx4 {vr(G+4*i,4)}, {vGA}, {srd(WS_)}, s{BLK + (i >> 2) + 2*(i & 2)} offen offset:{1024*(i & 1)} sc1 ;@ld_g"
        c_issue()
        gop = [P.vm(ld(i)) for i in range(16)]
        if not c["w2late"]:
            tr_rows(AREA_B, w2_reg, 0, 28, vWR)
        consts()
        if c["w2late"]:
            P("s_barrier")
            tr_rows(AREA_B, w2_reg, 0, 28, vWR)
        P(f"v_mov_b32 v{T+4}, 0", f"v_mov_b32 v{T+5}, 0", f"s_lshl_b32 {t0}, {sW}, 4", f"s_add_u32 {t0}, {t0}, {STAT}",
          f"v_mov_b32 v{T+7}, {t0}", f"v_and_b32 v{T+3}, 3, {vL}", f"v_lshlrev_b32 v{T+3}, 4, v{T+3}", f"v_add_u32 {vKR0}, {STAT}, v{T+3}",
          f"s_lshl_b32 {t0}, {sW}, 9", f"s_add_u32 {t0}, {t0}, {GU}", f"v_lshl_add_u32 {vKR1}, {vL}, 3, {t0}",
          f"v_lshlrev_b32 {vKG}, 3, {vL}", f"v_add_u32 {vKG}, {GU}, {vKG}",
          f"s_mov_b32 s{BLK+10}, 0x42e00000", f"s_mov_b32 s{BLK+12}, 0", f"s_mov_b32 s{BLK+13}, 0x80000000")
        sM = f"s{BLK+14}"
        pk = lambda d, a_: [f"v_pk_add_f32 {vr(d+k,2)}, {vr(d+k,2)}, {vr(a_+k,2)}" for k in (0, 2)]

        def grp(g, fail):
            r = G + 16 * g
            P(*[f"v_xor_b32 v{r+4*i}, {vTG}, v{r+4*i}" for i in range(4)],
              f"v_or3_b32 v{T}, v{r}, v{r+4}, v{r+8}", f"v_or_b32 v{T}, v{T}, v{r+12}", f"v_and_b32 v{T}, 0xff, v{T}", f"v_cmp_ne_u32 vcc, 0, v{T}",
              *pk(r, r + 4), *pk(r + 8, r + 12), f"s_cbranch_vccnz {fail}", f"s_bitset0_b32 {sM}, {g}", *pk(r, r + 8))

        P(f"s_mov_b32 {sM}, 15")
        for g in range(4):
            nx = P.label("g_first")
            P.wait(gop[4 * g + 3])
            grp(g, nx)
            P(f"{nx}:")
        top, out = P.label("g_top"), P.label("g_out")
        P(f"{top}:", f"s_cmp_eq_u32 {sM}, 0", f"s_cbranch_scc1 {out}")
        spin_step(P, c, out)
        for g in range(4):
            sk = P.label("g_skip")
            P(f"s_bitcmp1_b32 {sM}, {g}", f"s_cbranch_scc0 {sk}", *[ld(4*g + i) for i in range(4)], f"{sk}:")
        P("s_waitcnt vmcnt(0)")
        for g in range(4):
            sk = P.label("g_next")
            P(f"s_bitcmp1_b32 {sM}, {g}", f"s_cbranch_scc0 {sk}")
            grp(g, sk)
            P(f"{sk}:")
        P(f"s_branch {top}", f"{out}:")
        stamp(4)
        P(*pk(G, G + 32), *pk(G + 16, G + 48), *pk(G, G + 16))
        a, b = v(G), v(G+1)
        P(f"v_permlane32_swap_b32 v{G}, v{G+2}", f"v_permlane32_swap_b32 v{G+1}, v{G+3}",
          f"v_add_f32 {a}, {a}, v{G+2}", f"v_add_f32 {b}, {b}, v{G+3}")
        rb(P, a, a); rb(P, b, b)
        P(f"v_mul_f32 {a}, {a}, v{cGA}", f"v_mul_f32 {b}, {b}, v{cGA+1}")
        rb(P, a, a); rb(P, b, b)
        P(f"v_add_f32 {a}, {a}, v{cX}", f"v_add_f32 {b}, {b}, v{cX+1}")
        rb(P, a, a); rb(P, b, b)
        s1, s2, pv_ = v(T+4), v(T+5), v(T+6)
        d0, d1 = v(G+2), v(G+3)
        P(f"v_readfirstlane_b32 {t0}, {a}", f"s_mov_b64 exec, {mT}",
          f"v_subrev_f32 {d0}, {t0}, {a}", f"v_subrev_f32 {d1}, {t0}, {b}", f"v_add_f32 {s1}, {d0}, {d1}",
          f"v_mul_f32 {s2}, {d0}, {d0}", f"v_fmac_f32 {s2}, {d1}, {d1}", "s_mov_b64 exec, -1", f"v_mov_b32 {pv_}, {t0}")
        for ctl in ("row_ror:8 " + FULL, "row_ror:4 " + FULL, "row_ror:2 " + FULL, "row_ror:1 " + FULL,
                    "row_bcast:15 row_mask:0xa bank_mask:0xf", "row_bcast:31 row_mask:0xc bank_mask:0xf"):
            P(f"v_add_f32_dpp {s1}, {s1}, {s1} {ctl}", f"v_add_f32_dpp {s2}, {s2}, {s2} {ctl}")
        P(f"s_mov_b64 exec, s[{BLK+12}:{BLK+13}]", f"ds_write_b96 v{T+7}, {vr(T+4,3)}", "s_mov_b64 exec, -1")
        P.lgk()
        P("s_barrier")
        P(f"ds_read_b96 {vr(T+4,3)}, {vKR0}")
        P.lgk()
        mean, var, dl, rs = v(T), v(T+1), v(T+2), v(T+3)
        n112 = f"s{BLK+10}"
        P(f"v_fma_f32 {mean}, {pv_}, {n112}, {s1}",
          f"v_add_f32_dpp {mean}, {mean}, {mean} quad_perm:[1,0,3,2] {FULL}", f"v_add_f32_dpp {mean}, {mean}, {mean} quad_perm:[2,3,0,1] {FULL}",
          f"v_mul_f32 {mean}, {RN:#x}, {mean}", f"v_add_f32 {s1}, {s1}, {s1}", f"v_sub_f32 {dl}, {mean}, {pv_}",
          f"v_fma_f32 {var}, {dl}, {n112}, -{s1}", f"v_fma_f32 {var}, {var}, {dl}, {s2}")
        rb(P, mean, mean)
        P(f"v_sub_f32 {d0}, {a}, {mean}",
          f"v_add_f32_dpp {var}, {var}, {var} quad_perm:[1,0,3,2] {FULL}",
          f"v_sub_f32 {d1}, {b}, {mean}")
        rb(P, d0, d0)
        P(f"v_add_f32_dpp {var}, {var}, {var} quad_perm:[2,3,0,1] {FULL}")
        rb(P, d1, d1)
        P(f"v_mul_f32 {var}, {RN:#x}, {var}", f"v_max_f32 {var}, 0, {var}")
        rb(P, var, var)
        P(f"v_add_f32 {var}, {EPS:#x}, {var}"); rb(P, var, var)
        P(f"v_sqrt_f32 {var}, {var}"); rb(P, var, var)
        P(f"v_rcp_f32 {rs}, {var}", f"v_mul_f32 {d0}, {d0}, {rs}", f"v_mul_f32 {d1}, {d1}, {rs}")
        rb(P, d0, d0); rb(P, d1, d1)
        P(f"v_mul_f32 {d0}, {d0}, v{cCB}", f"v_mul_f32 {d1}, {d1}, v{cCB+1}")
        rb(P, d0, d0); rb(P, d1, d1)
        P(f"v_add_f32 {d0}, {d0}, v{cSB}", f"v_add_f32 {d1}, {d1}, v{cSB+1}", f"v_cvt_pk_bf16_f32 v{T}, {d0}, {d1}")
        HB, GD = VA, VQ
        hl = lambda k: (k >> 1) + 8 * (k & 1)
        for k in range(4):
            bc(HB + k, T, hl(k))
        nb = 4
        for ks in range(4):
            for mt in range(8):
                dd = vr(GD + 4 * mt, 4)
                if ks < 3:
                    P(f"v_mfma_f32_16x16x32_bf16 {dd}, {vr(HB+4*ks,4)}, {vr(w13_reg(ks, mt >> 2, mt & 3),4)}, {'0' if ks == 0 else dd}")
                else:
                    P(f"v_mfma_f32_16x16x16_bf16 {dd}, {vr(HB+12,2)}, {vr(w13_reg(3, mt >> 2, mt & 3),2)}, {dd}")
                if nb < 14:
                    bc(HB + nb, T, hl(nb)); nb += 1
        for m in range(2):
            for t in range(1, 4):
                P(f"v_mov_b32_dpp v{GD+16*m}, v{GD+16*m+4*t} quad_perm:[0,1,2,3] row_mask:{1 << t:#x} bank_mask:0xf")
        P(f"ds_write2_b32 {vKR1}, v{GD}, v{GD+16} offset0:0 offset1:1")
        P.lgk()
        P("s_barrier")
        P(f"ds_read2st64_b64 {vr(GD,4)}, {vKG} offset0:0 offset1:1", f"ds_read2st64_b64 {vr(GD+4,4)}, {vKG} offset0:2 offset1:3")
        P.lgk(1)
        P(f"v_add_f32 v{GD}, v{GD}, v{GD+2}", f"v_add_f32 v{GD+1}, v{GD+1}, v{GD+3}")
        P.lgk(0)
        g_, u_, e_ = v(GD), v(GD+1), v(GD+2)
        P(f"v_add_f32 v{GD+4}, v{GD+4}, v{GD+6}", f"v_add_f32 v{GD+5}, v{GD+5}, v{GD+7}",
          f"v_add_f32 {g_}, {g_}, v{GD+4}", f"v_add_f32 {u_}, {u_}, v{GD+5}")
        rb(P, g_, g_)
        P(f"v_mul_f32 {e_}, {LOG2E | 0x80000000:#x}, {g_}", f"v_exp_f32 {e_}, {e_}")
        rb(P, u_, u_)
        P(f"v_add_f32 {e_}, 1.0, {e_}", f"v_rcp_f32 {e_}, {e_}", f"v_mul_f32 {g_}, {g_}, {e_}")
        rb(P, g_, g_)
        P(f"v_mul_f32 {g_}, {g_}, {u_}", f"v_mov_b32_dpp {u_}, {g_} quad_perm:[1,0,3,2] {FULL}", f"v_cvt_pk_bf16_f32 {g_}, {g_}, {u_}")
        gemv_out(2, VA, w2_reg, VS, f"s{BLK+9}", lambda k: bc(VA + k, GD, 2 * k))
        P(f"s_lshl2_add_u32 {t0}, s2, {sW}", f"v_add_u32 v{T}, {t0}, {vL}", f"v_lshlrev_b32 v{T}, 21, v{T}", f"v_add_u32 v{T}, {EPOCH}, v{T}",
          f"v_mov_b32 v{T+1}, {sT}")
        P.vm(f"buffer_store_dword v{T+1}, v{T}, {srd(WS_)}, 0 offen sc1")
        stamp(5)
    else:
        G = VQ

        def gather(buf, name, last, tlast):
            ld = []
            for i in range(4):
                ld += [f"s_mov_b32 {t0}, {buf + 4096*i}", f"buffer_load_dwordx4 {vr(G+4*i,4)}, {last if i == 3 else vGA}, {srd(WS_)}, {t0} offen sc1"]
            iss, ver = poll(P, c, ld, [f"v_xor_b32 v{G+4*i}, {tlast if i == 3 else vTG}, v{G+4*i}" for i in range(4)] +
                            [f"v_or3_b32 v{T}, v{G}, v{G+4}, v{G+8}", f"v_or_b32 v{T}, v{T}, v{G+12}", f"v_and_b32 v{T}, 0xff, v{T}",
                             f"v_cmp_ne_u32 vcc, 0, v{T}"], name)
            iss(); ver()
            for step in (2, 1):
                for i in range(step):
                    for k in (0, 2):
                        P(f"v_pk_add_f32 {vr(G+4*i+k,2)}, {vr(G+4*i+k,2)}, {vr(G+4*(i+step)+k,2)}")
            P(f"v_permlane32_swap_b32 v{G}, v{G+2}", f"v_permlane32_swap_b32 v{G+1}, v{G+3}",
              f"v_add_f32 v{G}, v{G}, v{G+2}", f"v_add_f32 v{G+1}, v{G+1}, v{G+3}",
              f"v_permlane16_swap_b32 v{G}, v{G+1}", f"v_add_f32 v{G}, v{G}, v{G+1}",
              f"v_add_f32_dpp v{G}, v{G}, v{G} row_ror:8 {FULL}")
            rb(P, v(G), v(G))
        c_issue()
        consts()
        gather(PBUF, "p", vGA, vTG)
        P(f"v_mul_f32 v{G}, v{G}, v{cGA}"); rb(P, v(G), v(G))
        P(f"v_add_f32 v{cX}, v{G}, v{cX}"); rb(P, v(cX), v(cX))
        P(f"s_and_b64 {mT}, {mT}, {mN8}")
        stamp(4)
        gather(FBUF, "f", vWG, v(cSB+1))
        P(f"v_mul_f32 v{G}, v{G}, v{cCB}"); rb(P, v(G), v(G))
        P(f"v_add_f32 v{G}, v{G}, v{cX}", f"v_cvt_pk_bf16_f32 v{G}, v{G}, v{G}", f"s_mov_b64 exec, {mT}")
        P.vm(f"global_store_short {vKR0}, v{G}, {sp(pOUT)}")
        P("s_mov_b64 exec, -1")
        stamp(5)
    if c["padto"]:
        lp = P.label("pad")
        P(f"{lp}:", "s_memrealtime s[74:75]", "s_waitcnt lgkmcnt(0)", "s_sub_u32 s74, s74, s0", f"s_cmp_lt_u32 s74, {c['padto']}", f"s_cbranch_scc1 {lp}")
    if c["stamps"]:
        P("s_waitcnt vmcnt(0)")
        stamp(6)
        P(f"s_getreg_b32 {t1}, hwreg(HW_REG_XCC_ID, 0, 4)", "v_accvgpr_write_b32 a240, s0", f"v_accvgpr_write_b32 a247, {t1}",
          f"v_accvgpr_write_b32 a248, {sSPIN}", *[f"v_accvgpr_write_b32 a{249+i}, s{r}" for i, r in enumerate(MIDS)],
          f"s_lshl_b32 {t0}, s2, 2", f"s_add_u32 {t0}, {t0}, {sW}", f"s_lshl_b32 {t0}, {t0}, 6", f"s_add_u32 {t0}, {t0}, {STAMP}",
          f"v_mov_b32 v{T}, {t0}", "s_mov_b64 exec, 1", "s_nop 1",
          f"global_store_dwordx4 v{T}, a[240:243], {sp(pWS)}", f"global_store_dwordx4 v{T}, a[244:247], {sp(pWS)} offset:16",
          f"global_store_dwordx4 v{T}, a[248:251], {sp(pWS)} offset:32", f"global_store_dwordx4 v{T}, a[252:255], {sp(pWS)} offset:48")
    P("s_endpgm")


if __name__ == "__main__":
    kw = {}
    for a in sys.argv[2:]:
        k, val = a.split("=", 1)
        kw[k] = eval(val)
    open(sys.argv[1], "w").write(build(**kw))
```
